```python
import torch

def _softmax(x, axis=-1):
    return torch.softmax(x, dim=axis)
def _gelu(x):
    return torch.nn.functional.gelu(x, approximate="tanh")
def _silu(x):
    return torch.nn.functional.silu(x)
def _sigmoid(x):
    return torch.sigmoid(x)
def _layernorm(x, axis=-1, eps=1e-5):
    m = x.mean(dim=axis, keepdim=True)
    v = x.var(dim=axis, keepdim=True, unbiased=False)
    return (x - m) / torch.sqrt(v + eps)
def _scatter_add(tgt, idx, src, axis=0):
    return tgt.clone().index_add_(axis, idx, src)
def _segment_sum(src, seg, n):
    out = torch.zeros((n,) + src.shape[1:], dtype=src.dtype)
    return out.index_add_(0, seg, src)
def _pad(x, pw):
    flat = tuple(v for pair in reversed(pw) for v in pair)
    return torch.nn.functional.pad(x, flat)

kernel_name = 'parallel_sum__sliding_block__glu_gated_glu__prompt'

def setup_inputs():

    _w = (lambda a: (lambda t: t.to(torch.bfloat16) if t.is_floating_point() else t)(torch.as_tensor(a)))
    def _A_setup():
        B, S, D = 1, 2048, 512
        return {
            "x": _w((lambda *s: torch.randn(*s, dtype=torch.bfloat16) * 0.05)(B, S, D)),
            "wqkv": _w((lambda *s: torch.randn(*s, dtype=torch.bfloat16) * 0.05)(D, 3 * D)),
            "wo": _w((lambda *s: torch.randn(*s, dtype=torch.bfloat16) * 0.05)(D, D)),
        }
    _A_in = _A_setup()

    def _B_setup():
        B, S, D, F = 1, 2048, 512, 1792
        return {
            "x": _w((lambda *s: torch.randn(*s, dtype=torch.bfloat16) * 0.05)(B, S, D)),
            "w_gate": _w((lambda *s: torch.randn(*s, dtype=torch.bfloat16) * 0.05)(D, F)),
            "w_up": _w((lambda *s: torch.randn(*s, dtype=torch.bfloat16) * 0.05)(D, F)),
            "w_down": _w((lambda *s: torch.randn(*s, dtype=torch.bfloat16) * 0.05)(F, D)),
        }
    _B_in = _B_setup()

    return {
        "A_x": _A_in["x"],
        "A_wqkv": _A_in["wqkv"],
        "A_wo": _A_in["wo"],
        "B_x": _B_in["x"],
        "B_w_gate": _B_in["w_gate"],
        "B_w_up": _B_in["w_up"],
        "B_w_down": _B_in["w_down"],
    }

def reference(A_x, A_wqkv, A_wo, B_x, B_w_gate, B_w_up, B_w_down):
    def _A_ref(x, wqkv, wo):
        B, S, D = x.shape
        H = 32; Dh = D // H; W = 256
        qkv = (lambda x, *d: x.permute(*d))((x @ wqkv).reshape(B, S, 3, H, Dh), 2, 0, 3, 1, 4)
        q, k, v = qkv[0], qkv[1], qkv[2]
        scores = torch.einsum("bhqd,bhkd->bhqk", q, k) * (Dh ** -0.5)
        idx = torch.arange(S)
        mask = (idx[:, None] - idx[None, :] >= 0) & (idx[:, None] - idx[None, :] < W)
        scores = torch.where(mask[None, None], scores, -1e9)
        p = _softmax(scores, axis=-1)
        o = torch.einsum("bhqk,bhkd->bhqd", p, v)
        return (lambda x, *d: x.permute(*d))(o, 0, 2, 1, 3).reshape(B, S, D) @ wo

    def _B_ref(x, w_gate, w_up, w_down):
        g = torch.einsum("bsd,df->bsf", x, w_gate)
        u = torch.einsum("bsd,df->bsf", x, w_up)
        h = _sigmoid(g) * u
        return torch.einsum("bsf,fd->bsd", h, w_down)

    x = A_x
    xn = _layernorm(x, axis=-1)
    return x + _A_ref(xn, A_wqkv, A_wo) + _B_ref(xn, B_w_gate, B_w_up, B_w_down)
```

```python
import re

_RANGE = re.compile(r'^([vas])\[(\d+):(\d+)(?:\+(\d+))?\]$')
_SINGLE = re.compile(r'^([vas])(\d+)$')

def expand(op):
    op = op.strip()
    neg = op.lstrip('-')
    if neg.startswith('abs(') or neg.startswith('|'):
        neg = neg.strip('|').replace('abs(', '').rstrip(')')
    m = _RANGE.match(neg)
    if m:
        lo, hi = int(m.group(2)), int(m.group(3))
        return [f"{m.group(1)}{i}" for i in range(lo, hi + 1)]
    m = _SINGLE.match(neg)
    if m:
        return [neg]
    if neg in ('vcc', 'exec', 'm0', 'scc'):
        return [neg]
    if neg in ('vcc_lo', 'vcc_hi'):
        return ['vcc']
    if neg in ('exec_lo', 'exec_hi'):
        return ['exec']
    return []

def R(kind, lo, n=1):
    return f"{kind}{lo}" if n == 1 else f"{kind}[{lo}:{lo+n-1}]"
def v(lo, n=1): return R('v', lo, n)
def a(lo, n=1): return R('a', lo, n)
def s(lo, n=1): return R('s', lo, n)

INLINE_F = {'0.5', '-0.5', '1.0', '-1.0', '2.0', '-2.0', '4.0', '-4.0'}
def is_literal(op):
    op = op.strip()
    if expand(op): return False
    if op in INLINE_F or op in ('off',): return False
    try:
        val = int(op, 0)
    except ValueError:
        try:
            float(op); return True
        except ValueError:
            return False
    return not (-16 <= val <= 64)

TRANS = ('v_exp_f32', 'v_log_f32', 'v_rcp_f32', 'v_rsq_f32', 'v_sqrt_f32', 'v_sin_f32', 'v_cos_f32')
VOP3_ONLY = ('v_fma_f32', 'v_max3_f32', 'v_min3_f32', 'v_med3_f32', 'v_mul_lo_u32', 'v_mul_hi_u32', 'v_lshl_add_u32',
             'v_add_lshl_u32', 'v_add3_u32', 'v_and_or_b32', 'v_bfe_u32', 'v_bfi_b32', 'v_cvt_pk_bf16_f32', 'v_mad_u32_u24',
             'v_lshl_or_b32', 'v_or3_b32', 'v_perm_b32', 'v_pk_', 'v_dot2_', 'v_readlane_b32', 'v_writelane_b32',
             'v_mbcnt', 'v_xad_u32', 'v_alignbit_b32', 'v_accvgpr', 'v_lshlrev_b64', 'v_mad_u64', 'v_ldexp_f32', 'v_cvt_pk_')

class Inst:
    __slots__ = ('text', 'size', 'kind', 'reads', 'writes', 'passes', 'srcc', 'promotable', 'mn')
    def __init__(self, text, size, kind, reads, writes, passes=0, srcc=(), promotable=False, mn=''):
        self.text, self.size, self.kind = text, size, kind
        self.reads, self.writes = set(reads), set(writes)
        self.passes, self.srcc, self.promotable, self.mn = passes, set(srcc), promotable, mn

class Emit:
    def __init__(self, align=True):
        self.ins = []
        self.off = 0
        self.align = align
        self.lgkm = 0
        self.vm = 0
        self.lgkm_done = 0
        self.vm_done = 0
        self.pend = {}
        self.window = []
        self.nnop = 0
        self.stats = {}
        self.alt = []
        self.alt_ages = []

    def _push(self, inst):
        if self.align and inst.size == 8 and self.off % 8 == 4:
            prev = next((p for p in reversed(self.ins) if isinstance(p, Inst)), None)
            if prev is not None and prev is self.ins[-1] and prev.promotable and prev.size == 4:
                prev.text = prev.text.replace(prev.mn + '_e32', prev.mn + '_e64', 1)
                prev.size = 8
                prev.promotable = False
                self.off += 4
            else:
                n = Inst('s_nop 0', 4, 'nop', (), ())
                self.ins.append(n); self._wappend(n); self.off += 4
        self.ins.append(inst)
        self.off += inst.size
        self._wappend(inst)
        self.stats[inst.kind] = self.stats.get(inst.kind, 0) + 1

    def _wappend(self, inst, k=1):
        for _ in range(k):
            self.window.append(inst)
            for w in self.alt: w.append(inst)
        if len(self.window) > 40:
            self.window = self.window[-40:]
        self.alt = [w[-40:] for w in self.alt]
        self.alt_ages = [x + k for x in self.alt_ages]
        keep = [i for i, x in enumerate(self.alt_ages) if x <= 22]
        self.alt = [self.alt[i] for i in keep]; self.alt_ages = [self.alt_ages[i] for i in keep]

    def cond_begin(self):
        return (dict(self.pend), self.lgkm, self.vm, self.lgkm_done, self.vm_done, list(self.window), [list(w) for w in self.alt])

    def cond_end(self, st):
        self.pend, self.lgkm, self.vm, self.lgkm_done, self.vm_done = dict(st[0]), st[1], st[2], st[3], st[4]
        new = [list(st[5])] + [list(w) for w in st[6]][:2]
        self.alt = self.alt[:2] + new
        self.alt_ages = self.alt_ages[:2] + [0] * len(new)

    def nop(self, n):
        while n > 0:
            k = min(n, 16)
            i = Inst(f's_nop {k-1}', 4, 'nop', (), ())
            self.ins.append(i); self.off += 4
            self._wappend(i, k)
            self.nnop += k
            n -= k

    def comment(self, t):
        self.ins.append(f'  ; {t}')

    def label(self, name, drain=True):
        self.ins.append(f'{name}:')

    def raw(self, text, size=4):
        i = Inst(text, size, 'other', (), ())
        self._push(i)

    def wait(self, lgkm=None, vm=None):
        parts = []
        if vm is not None:
            vm = max(0, min(vm, 63)); parts.append(f'vmcnt({vm})')
            self.vm_done = max(self.vm_done, self.vm - vm)
        if lgkm is not None:
            lgkm = max(0, min(lgkm, 15)); parts.append(f'lgkmcnt({lgkm})')
            self.lgkm_done = max(self.lgkm_done, self.lgkm - lgkm)
        if parts:
            self._push(Inst('s_waitcnt ' + ' '.join(parts), 4, 'wait', (), ()))
            self.pend = {r: p for r, p in self.pend.items()
                         if not ((p[0] == 'l' and p[1] < self.lgkm_done) or (p[0] == 'v' and p[1] < self.vm_done))}

    def wait_vm_seq(self, seq):
        if seq >= self.vm_done:
            self.wait(vm=self.vm - seq - 1)
    def wait_lgkm_seq(self, seq):
        if seq >= self.lgkm_done:
            self.wait(lgkm=self.lgkm - seq - 1)

    def _need(self, regs):
        nl = nv = None
        for r in regs:
            p = self.pend.get(r)
            if p is None: continue
            if p[0] == 'l' and p[1] >= self.lgkm_done:
                nl = p[1] if nl is None else max(nl, p[1])
            if p[0] == 'v' and p[1] >= self.vm_done:
                nv = p[1] if nv is None else max(nv, p[1])
        if nl is not None or nv is not None:
            self.wait(lgkm=None if nl is None else self.lgkm - nl - 1, vm=None if nv is None else self.vm - nv - 1)

    def _hazard(self, inst):
        need = 0
        for win in [self.window] + self.alt:
          need = max(need, self._hazard1(inst, win))
        if need: self.nop(need)

    def _hazard1(self, inst, window):
        need = 0
        for d, p in enumerate(reversed(window)):
            if d >= 20: break
            req = 0
            if p.kind in ('valu', 'trans'):
                if inst.kind == 'mfma' and (p.writes & inst.reads): req = max(req, 2)
                if p.kind == 'trans' and inst.kind in ('valu', 'mfma', 'vmem', 'ds') and (p.writes & inst.reads): req = max(req, 1)
                sg = {w for w in p.writes if w[0] == 's' or w == 'vcc'}
                if sg & inst.reads:
                    if inst.kind in ('valu', 'trans'): req = max(req, 2)
                    if inst.kind == 'vmem': req = max(req, 5)
                    if inst.mn in ('v_readlane_b32', 'v_writelane_b32'): req = max(req, 4)
                if inst.mn.startswith('v_permlane') and (p.writes & inst.reads): req = max(req, 2)
                if inst.mn in ('v_readfirstlane_b32', 'v_readlane_b32') and (p.writes & inst.reads): req = max(req, 1)
                if 'exec' in p.writes: req = max(req, 5)
            if p.kind == 'mfma':
                big = {8: 12, 4: 8, 16: 20, 2: 5}[p.passes]
                if inst.kind == 'mfma':
                    ov = p.writes & inst.srcc
                    if ov and (inst.srcc != p.writes or inst.passes != p.passes):
                        req = max(req, big - 2)
                    if p.writes & (inst.reads - inst.srcc): req = max(req, big)
                    if (p.writes & inst.writes) and not (inst.srcc == p.writes): req = max(req, big)
                elif inst.kind in ('valu', 'trans', 'vmem', 'ds'):
                    if p.writes & (inst.reads | inst.writes): req = max(req, big)
                    if inst.kind in ('valu', 'trans') and (p.srcc & inst.writes): req = max(req, {8: 7, 4: 3, 16: 15, 2: 1}[p.passes])
            if p.kind == 'vmem' and p.mn.endswith(('x3', 'x4')) and 'store' in p.mn and inst.kind in ('valu', 'trans'):
                if p.reads & inst.writes: req = max(req, 2)
            if p.kind == 'salu' and 'm0' in p.writes and inst.kind == 'vmem' and 'm0' in inst.reads: req = max(req, 1)
            if req > d: need = max(need, req - d)
        return need

    def I(self, text, **kw):
        text = text.strip()
        parts = text.split(None, 1)
        mn = parts[0]
        rest = parts[1] if len(parts) > 1 else ''
        ops = [o.strip() for o in rest.split(',')] if rest else []
        mods = ''
        if ops:
            last = ops[-1].split()
            ops[-1] = last[0]
            mods = ' '.join(last[1:])
        reads, writes = [], []
        kind = None; size = 4; passes = 0; srcc = (); promotable = False
        ex = [expand(o) for o in ops]
        if mn.startswith('v_mfma'):
            kind = 'mfma'; size = 8
            passes = 8 if '32x32x16' in mn else 4 if '16x16x32' in mn else None
            assert passes
            writes = ex[0]; reads = ex[1] + ex[2] + ex[3]; srcc = ex[3]
        elif mn.startswith('ds_'):
            kind = 'ds'; size = 8
            if mn.startswith('ds_read') or mn.startswith('ds_bpermute') or mn.startswith('ds_swizzle'):
                writes = ex[0]; reads = sum(ex[1:], [])
            else:
                reads = sum(ex, [])
        elif mn.startswith('buffer_') or mn.startswith('global_'):
            kind = 'vmem'; size = 8
            if 'lds' in mods.split():
                reads = sum(ex, []) + ['m0']
            elif 'load' in mn:
                writes = ex[0]; reads = sum(ex[1:], [])
            elif 'atomic' in mn and 'sc0' in mods.split():
                writes = ex[0]; reads = sum(ex, [])
            else:
                reads = sum(ex, [])
        elif mn.startswith('s_load') or mn.startswith('s_memtime') or mn.startswith('s_memrealtime'):
            kind = 'smem'; size = 8
            writes = ex[0]; reads = sum(ex[1:], [])
        elif mn.startswith('s_'):
            kind = 'salu'
            size = 8 if any(is_literal(o) for o in ops) and not mn.startswith(('s_cbranch', 's_branch', 's_nop', 's_setprio', 's_sleep', 's_movk', 's_addk', 's_barrier', 's_endpgm')) else 4
            if mn.startswith('s_cmp') or mn.startswith('s_bitcmp'):
                reads = sum(ex, []); writes = ['scc']
            elif mn.startswith(('s_cbranch', 's_branch', 's_barrier', 's_setprio', 's_sleep', 's_endpgm', 's_nop')):
                reads = []
            elif mn.endswith('saveexec_b64'):
                writes = ex[0] + ['exec', 'scc']; reads = ex[1] + ['exec']
            else:
                writes = ex[0] + ['scc']; reads = sum(ex[1:], [])
                if mn.startswith(('s_addc', 's_cselect', 's_subb')): reads.append('scc')
                if mn.startswith(('s_mov', 's_cselect', 's_getpc', 's_mul_i32', 's_movk')): writes = ex[0]
        elif mn.startswith('v_'):
            base = mn
            kind = 'trans' if base in TRANS else 'valu'
            lit = any(is_literal(o) for o in ops)
            if base.startswith('v_cmp'):
                writes = ex[0]; reads = sum(ex[1:], [])
                e32ok = ops[0] == 'vcc' and bool(_SINGLE.match(ops[2])) and ops[2][0] == 'v'
            elif base.startswith('v_permlane') :
                writes = ex[0] + ex[1]; reads = ex[0] + ex[1]; e32ok = True
            elif base in ('v_readfirstlane_b32',):
                writes = ex[0]; reads = ex[1]; e32ok = True
            else:
                writes = ex[0]; reads = sum(ex[1:], [])
                if base in ('v_fmac_f32', 'v_dot2c_f32_bf16', 'v_writelane_b32'): reads += ex[0]
                if base in ('v_add_co_u32', 'v_addc_co_u32', 'v_sub_co_u32', 'v_subb_co_u32'):
                    writes = ex[0] + ex[1]; reads = sum(ex[2:], [])
                    e32ok = ops[1] == 'vcc' and ops[3][0] == 'v' and _SINGLE.match(ops[3]) is not None and (len(ops) < 5 or ops[4] == 'vcc')
                elif base == 'v_cndmask_b32':
                    e32ok = ops[3] == 'vcc' and bool(_SINGLE.match(ops[2])) and ops[2][0] == 'v'
                elif len(ops) == 2:
                    e32ok = True
                else:
                    e32ok = bool(_SINGLE.match(ops[-1])) and ops[-1][0] == 'v' and len(ops) == 3
            if any(o.startswith('-') and expand(o) for o in ops[1:]) or any('abs(' in o or '|' in o for o in ops) or 'clamp' in mods or 'mul:' in mods or 'div:' in mods or 'op_sel' in mods:
                e32ok = False
            vop3only = base.startswith(VOP3_ONLY)
            if base in ('v_readfirstlane_b32', 'v_dot2c_f32_bf16') or base.startswith('v_permlane') or base.startswith('v_accvgpr'):
                size = 8 if base.startswith('v_accvgpr') else 4
                if base == 'v_dot2c_f32_bf16':
                    pass
            elif vop3only:
                size = 8; assert not lit, text
            elif lit:
                assert e32ok, text
                size = 8; text = text.replace(mn, mn + '_e32', 1)
            elif e32ok:
                size = 4; text = text.replace(mn, mn + '_e32', 1); promotable = True
            else:
                size = 8; text = text.replace(mn, mn + '_e64', 1)
        else:
            raise ValueError(text)
        if 'reads' in kw: reads = list(reads) + kw['reads']
        if 'writes' in kw: writes = list(writes) + kw['writes']
        inst = Inst('  ' + text, size, kind, reads, writes, passes, srcc, promotable, mn)
        self._need(set(reads) | set(writes))
        self._hazard(inst)
        self._push(inst)
        if kind == 'ds':
            for w in writes: self.pend[w] = ('l', self.lgkm)
            self.lgkm += 1
            return self.lgkm - 1
        if kind == 'vmem':
            for w in writes: self.pend[w] = ('v', self.vm)
            self.vm += 1
            return self.vm - 1
        if kind == 'smem':
            for w in writes: self.pend[w] = ('l', self.lgkm + 100)
            self.lgkm += 0
        return None

    def smem_wait(self):
        self._push(Inst('  s_waitcnt lgkmcnt(0)', 4, 'wait', (), ()))
        self.lgkm_done = self.lgkm
        self.pend = {r: p for r, p in self.pend.items() if p[0] != 'l'}

    def barrier(self):
        self._push(Inst('  s_barrier', 4, 'salu', (), ()))

    def text(self):
        return '\n'.join(i if isinstance(i, str) else i.text for i in self.ins) + '\n'

    def pad8(self):
        if self.off % 8: self.nop(1)
```

```python
from emit import *
import struct

QF = 0
VF = 4 << 20
AF = 6 << 20
W2F = 15 << 20
FLAGS = 18 << 20
WS_BYTES = 20 << 20

LOG2E = 1.4426950408889634
QSCALE = 0.25 * LOG2E
def f2u(x): return struct.unpack('<I', struct.pack('<f', x))[0]

SLOT = 8192
NSLOT = 17
W2P = NSLOT * SLOT
XCH = W2P + 16384
XCH_STAT = XCH
XCH_CS = XCH + 4096
XCH_RS = XCH + 7168
K1_LDS = 163840

KA = 64
SRD_X, SRD_QKV, SRD_G, SRD_U, SRD_WS, SRD_WD, SRD_WO = 8, 12, 16, 20, 24, 28, 32
S_UB = 36
S_XB = 41
S_W2K = 42
S_T = 43
S_INV512 = 44
S_RH = 45
S_MASK = 46
S_C = 47
S_OUT = 48
S_QSC = 56
S_WAVE = 57
S_MT = 58
S_P = 59
S_R = 60
S_T2 = 61
S_T3 = 62
S_W2O = 63

V_NEGHF = 15
V_RSW = 14
V_CSR = 13
V_RSR = 12
V_SEL = 4
V_W2R = 8
V_W2D = 9
V_DX = 16; V_DW = 18; V_DQ = 20
V_XR = 22; V_XS = 26; V_WR = 28
V_L16 = 31; V_VST = 32; V_XCS = 33; V_XCR = 34; V_XCC = 35
CSREG = [92, 96, 100, 36]
V_ST = 40; V_SF = 48; V_UN = 56
V_NRL = 64; V_IRS = 66; V_RSQ = 68; V_RST = 70
V_XAUG = 72; V_WAUG = 80
V_WF = 104
V_ACC = 128
def acc(slot, rbk): return V_ACC + (slot * 2 + rbk) * 16
def xa(rbk, t): return (rbk * 32 + t) * 4

def srd(e, d, lo, nbytes):
    e.I(f's_mov_b32 s{d}, s{lo}')
    e.I(f's_and_b32 s{d+1}, s{lo+1}, 0xffff')
    e.I(f's_mov_b32 s{d+2}, {nbytes}')
    e.I(f's_mov_b32 s{d+3}, 0x20000')

def run(e, x):
    if callable(x): x(e)
    else: e.I(x)

def interleave(e, mf, fl):
    n = len(mf); m = len(fl); j = 0
    for i, x in enumerate(mf):
        run(e, x)
        tgt = (m * (i + 1) + n - 1) // n
        while j < tgt:
            run(e, fl[j]); j += 1
    while j < m:
        run(e, fl[j]); j += 1

class Ring:
    def __init__(self):
        self.free = list(range(NSLOT)); self.items = []; self.next = 0; self.slot = {}; self.seq = {}
    def alloc(self, item):
        if item[0] == 'x':
            if item[1] == 0:
                c = [s_ for s_ in (0, 2, 4, 6) if s_ in self.free and s_ + 1 in self.free]
                if not c: return None
                sl = c[0]
            else:
                sl = self.slot[('x', 0, item[2])] + 1
        else:
            cand = [s_ for s_ in self.free if s_ >= 6] or ([] if self.x_pending() else self.free)
            if not cand: return None
            sl = max(cand)
        self.free.remove(sl); self.slot[item] = sl
        return sl
    def x_pending(self):
        return any(it[0] == 'x' for it in self.items[self.next:])

def k1_prologue(e):
    e.I('s_cmp_ge_u32 s2, 256')
    e.I('s_cbranch_scc1 K1_END')
    e.I(f's_load_dwordx16 s[{KA}:{KA+15}], s[0:1], 0')
    e.I(f's_load_dwordx4 s[{KA+16}:{KA+19}], s[0:1], 64')
    e.I('s_and_b32 s3, s2, 7')
    e.I('s_lshr_b32 s4, s2, 3')
    e.I('s_and_b32 s5, s3, 1')
    e.I('s_lshl_b32 s5, s5, 3')
    e.I('s_and_b32 s6, s4, 7')
    e.I(f's_add_u32 s{S_MT}, s5, s6')
    e.I(f's_lshr_b32 s{S_P}, s3, 1')
    e.I(f's_lshr_b32 s{S_R}, s4, 3')
    e.I('v_and_b32 v1, 63, v0')
    e.I('v_lshrrev_b32 v2, 6, v0')
    e.I('s_nop 0')
    e.I(f'v_readfirstlane_b32 s{S_WAVE}, v2')
    e.I(f's_mov_b32 s{S_MASK}, 0xffff0000')
    e.I(f's_mov_b32 s{S_INV512}, 0x{f2u(1.0/512):08x}')
    e.I(f's_lshr_b32 s{S_RH}, s{S_WAVE}, 1')
    e.I(f's_and_b32 s{S_C}, s{S_WAVE}, 1')
    e.I(f's_lshl_b32 s{S_W2K}, s{S_WAVE}, 11')
    e.I(f's_lshl_b32 s{S_XB}, s{S_MT}, 17')
    V = e.I
    V(f'v_lshlrev_b32 v{V_L16}, 4, v1')
    V('v_lshrrev_b32 v3, 3, v1')
    V('v_lshrrev_b32 v10, 4, v1')
    V('v_and_b32 v11, 7, v1')
    V(f's_lshl_b32 s{S_T}, s{S_WAVE}, 4')
    V(f'v_add_u32 v3, s{S_T}, v3')
    for j in range(2):
        V(f'v_add_u32 v40, {4*j}, v10')
        V('v_and_b32 v40, 7, v40')
        V('v_xor_b32 v40, v11, v40')
        V('v_lshlrev_b32 v40, 4, v40')
        V(f'v_lshl_add_u32 v{V_DX+j}, v3, 10, v40')
        if j: V(f'v_add_u32 v{V_DX+j}, {8*1024 - 1024}, v{V_DX+j}')
    V('v_lshrrev_b32 v40, 2, v1')
    V('v_xor_b32 v40, v40, v10')
    V('v_and_b32 v40, 1, v40')
    V('v_lshlrev_b32 v40, 6, v40')
    V('v_and_b32 v41, 3, v1')
    V('v_lshl_add_u32 v40, v41, 4, v40')
    for (vd, stride) in ((V_DW, 3584), (V_DQ, 3072)):
        V(f's_mov_b32 s{S_T}, {stride}')
        V(f'v_mul_lo_u32 v41, v3, s{S_T}')
        V(f'v_add_u32 v{vd}, v41, v40')
        V(f'v_add_u32 v{vd+1}, {8*stride - 1024}, v{vd}')
    V('v_and_b32 v40, 31, v1')
    V('v_lshrrev_b32 v41, 5, v1')
    V('v_lshrrev_b32 v42, 1, v40')
    V('v_and_b32 v42, 7, v42')
    V(f's_lshl_b32 s{S_T}, s{S_RH}, 13')
    V(f'v_lshlrev_b32 v43, 7, v40')
    V(f'v_add_u32 v43, s{S_T}, v43')
    for ks in range(4):
        V(f'v_add_u32 v44, {2*ks}, v41')
        V('v_xor_b32 v44, v44, v42')
        V(f'v_lshl_add_u32 v{V_XR+ks}, v44, 4, v43')
    V(f's_cmp_eq_u32 s{S_C}, 1')
    V('s_cselect_b64 vcc, -1, 0')
    V(f'v_cndmask_b32 v{V_XS}, v{V_XR}, v{V_XR+1}, vcc')
    V(f'v_cndmask_b32 v{V_XS+1}, v{V_XR+2}, v{V_XR+3}, vcc')
    V('v_bfe_u32 v44, v1, 2, 2')
    V('v_lshl_add_u32 v45, v41, 3, v44')
    V('v_lshlrev_b32 v45, 7, v45')
    V('v_lshrrev_b32 v46, 1, v44')
    V(f'v_xor_b32 v46, s{S_C}, v46')
    V('v_lshl_add_u32 v45, v46, 6, v45')
    V('v_and_b32 v46, 1, v10')
    V('v_lshl_add_u32 v45, v46, 5, v45')
    V('v_and_b32 v46, 3, v1')
    V(f'v_lshl_add_u32 v{V_WR}, v46, 3, v45')
    V(f'v_add_u32 v{V_WR+1}, 0x10000, v{V_WR}')
    V(f'v_add_u32 v{V_WR+2}, 0x20000, v{V_WR}')
    V('v_and_b32 v44, 15, v1')
    V('v_lshlrev_b32 v44, 4, v44')
    V('v_lshl_add_u32 v44, v41, 8, v44')
    V('v_and_b32 v46, 1, v10')
    V(f'v_lshl_add_u32 v{V_VST}, v46, 16, v44')
    V(f's_lshl_b32 s{S_T}, s{S_RH}, 6')
    V(f'v_add_u32 v44, s{S_T}, v40')
    V(f'v_lshlrev_b32 v45, 5, v44')
    V(f'v_add_u32 v{V_XCR}, {XCH_STAT}, v45')
    V(f's_lshl_b32 s{S_T}, s{S_C}, 4')
    V(f'v_lshl_add_u32 v46, v41, 3, v{V_XCR}')
    V(f'v_add_u32 v{V_XCS}, s{S_T}, v46')
    V(f'v_lshlrev_b32 v45, 2, v44')
    V(f'v_add_u32 v{V_RSW}, {XCH_RS}, v45')
    V(f's_lshl_b32 s{S_T}, s{S_RH}, 8')
    V(f'v_lshlrev_b32 v45, 4, v41')
    V(f'v_add_u32 v45, s{S_T}, v45')
    V(f'v_add_u32 v{V_RSR}, {XCH_RS}, v45')
    V(f's_lshl_b32 s{S_T}, s{S_C}, 8')
    V(f'v_lshlrev_b32 v45, 3, v40')
    V(f's_add_u32 s{S_T}, s{S_T}, 0x20000')
    V(f'v_add_u32 v{V_CSR}, s{S_T}, v45')
    V(f's_lshl_b32 s{S_T}, s{S_RH}, 2')
    V(f'v_add_u32 v{V_XCC}, s{S_T}, v{V_CSR}')
    V('v_lshrrev_b32 v44, 2, v1')
    V('v_xor_b32 v44, v44, v10')
    V('v_and_b32 v44, 1, v44')
    V('v_and_b32 v45, 3, v1')
    V('v_or_b32 v44, v44, v45')
    V('v_cmp_eq_u32 vcc, 0, v44')
    V('v_mov_b32 v45, 0x3f803f80')
    V(f'v_cndmask_b32 v{V_SEL}, 0, v45, vcc')
    for i in range(1, 4): V(f'v_mov_b32 v{V_SEL+i}, v{V_SEL}')
    V('v_cmp_eq_u32 vcc, 0, v41')
    V('v_mov_b32 v45, -1.0')
    V(f'v_cndmask_b32 v{V_NEGHF}, 0, v45, vcc')
    V('v_and_b32 v44, 15, v1')
    V('v_lshlrev_b32 v44, 4, v44')
    V('v_lshl_add_u32 v44, v10, 10, v44')
    V(f's_lshl_b32 s{S_T}, s{S_WAVE}, 8')
    V(f'v_add_u32 v{V_W2D}, s{S_T}, v44')
    V('v_bfe_u32 v44, v1, 2, 2')
    V('v_lshl_add_u32 v44, v41, 2, v44')
    V('v_lshlrev_b32 v44, 8, v44')
    V('v_and_b32 v46, 1, v10')
    V('v_lshl_add_u32 v44, v46, 5, v44')
    V('v_and_b32 v46, 3, v1')
    V('v_lshl_add_u32 v44, v46, 3, v44')
    V(f's_lshl_b32 s{S_T}, s{S_WAVE}, 12')
    V(f's_add_u32 s{S_T}, s{S_T}, {W2P}')
    V(f'v_add_u32 v{V_W2R}, s{S_T}, v44')
    e.smem_wait()
    srd(e, SRD_X, KA + 0, 2048 * 1024)
    srd(e, SRD_QKV, KA + 2, 512 * 3072)
    srd(e, SRD_G, KA + 8, 512 * 3584)
    srd(e, SRD_U, KA + 10, 512 * 3584)
    srd(e, SRD_WS, KA + 18, WS_BYTES)
    srd(e, SRD_WD, KA + 12, 1792 * 1024)
    srd(e, SRD_WO, KA + 4, 512 * 1024)
    e.I(f's_lshl_b32 s{S_T2}, s{S_MT}, 2')
    e.I(f's_lshl_b32 s{S_T}, s{S_RH}, 1')
    e.I(f's_add_u32 s{S_T2}, s{S_T2}, s{S_T}')
    e.I(f's_cmp_eq_u32 s{S_R}, 3')
    e.I('s_cbranch_scc1 K1_TYPEB')

def out_gu(e, sdst, s_pu):
    e.I(f's_lshl_b32 s{S_T}, s{s_pu}, 1')
    e.I(f's_add_u32 s{S_T}, s{S_T}, s{S_C}')
    e.I(f's_lshl_b32 s{S_T}, s{S_T}, 1')
    e.I(f's_mul_i32 s{S_T3}, s{S_T2}, 144')
    e.I(f's_add_u32 s{S_T}, s{S_T}, s{S_T3}')
    e.I(f's_lshl_b32 s{S_T}, s{S_T}, 10')
    e.I(f's_add_u32 s{sdst}, s{S_T}, {AF}')
    e.I(f's_add_u32 s{sdst+1}, s{sdst}, {144*1024}')

def out_head(e, sdst, s_unit, base_off, n):
    e.I(f's_lshl_b32 s{S_T}, s{s_unit}, 1')
    e.I(f's_add_u32 s{S_T}, s{S_T}, s{S_C}')
    e.I(f's_lshl_b32 s{S_T}, s{S_T}, 17')
    e.I(f's_lshl_b32 s{S_T3}, s{S_T2}, 10')
    e.I(f's_add_u32 s{S_T}, s{S_T}, s{S_T3}')
    if base_off: e.I(f's_add_u32 s{sdst}, s{S_T}, {base_off & 0xffffffff}')
    else: e.I(f's_mov_b32 s{sdst}, s{S_T}')
    if n > 1: e.I(f's_add_u32 s{sdst+1}, s{sdst}, 65536')

def k1_body(e, typ):
    pfx = f'K1{typ}'
    U = 84
    if typ == 'A':
        kinds = ['G', 'U', 'G', 'U', 'Q']
        e.I(f's_mul_i32 s{U}, s{S_P}, 3')
        e.I(f's_add_u32 s{U}, s{U}, s{S_R}')
        e.I(f's_lshl_b32 s{U+1}, s{U}, 1')
        e.I(f's_add_u32 s{U+2}, s{U+1}, 1')
        e.I(f's_lshl_b32 s{S_UB+0}, s{U+1}, 7')
        e.I(f's_mov_b32 s{S_UB+1}, s{S_UB+0}')
        e.I(f's_lshl_b32 s{S_UB+2}, s{U+2}, 7')
        e.I(f's_mov_b32 s{S_UB+3}, s{S_UB+2}')
        e.I(f's_lshl_b32 s{S_UB+4}, s{U}, 7')
        out_gu(e, S_OUT, U + 1); out_gu(e, S_OUT + 2, U + 2)
        out_head(e, S_OUT + 4, U, QF, 2)
        e.I(f's_cmp_lt_u32 s{U}, 8')
        e.I(f's_cselect_b32 s{S_QSC}, 0x{f2u(QSCALE):08x}, 1.0')
    else:
        kinds = ['G', 'U', 'Q', 'Q', 'Q']
        e.I(f's_add_u32 s{U}, s{S_P}, 24')
        e.I(f's_add_u32 s{U+1}, s{S_P}, 12')
        e.I(f's_lshl_b32 s{U+2}, s{S_P}, 1')
        e.I(f's_add_u32 s{U+2}, s{U+2}, 16')
        e.I(f's_add_u32 s{U+3}, s{U+2}, 1')
        e.I(f's_lshl_b32 s{S_UB+0}, s{U}, 7')
        e.I(f's_mov_b32 s{S_UB+1}, s{S_UB+0}')
        e.I(f's_lshl_b32 s{S_UB+2}, s{U+2}, 7')
        e.I(f's_lshl_b32 s{S_UB+3}, s{U+3}, 7')
        e.I(f's_lshl_b32 s{S_UB+4}, s{U+1}, 7')
        out_gu(e, S_OUT, U)
        out_head(e, S_OUT + 2, U + 2, 0, 1)
        out_head(e, S_OUT + 3, U + 3, 0, 1)
        out_head(e, S_OUT + 4, U + 1, QF, 2)
        e.I(f's_mov_b32 s{S_QSC}, 1.0')
    usrd = {'G': SRD_G, 'U': SRD_U, 'Q': SRD_QKV}
    ustride = {'G': 3584, 'U': 3584, 'Q': 3072}
    uvd = {'G': V_DW, 'U': V_DW, 'Q': V_DQ}
    isV = [False, False, typ == 'B', typ == 'B', False]

    ring = Ring()
    for s_ in range(8):
        ring.items += [('x', 0, s_), ('x', 1, s_), ('w', 0, s_), ('w', 1, s_), ('w', 2, s_)]
    for u in (3, 4):
        for s_ in range(8): ring.items.append(('w', u, s_))

    def dma_item_ops(item):
        sl = ring.slot[item]
        if item[0] == 'x':
            _, hx, s_ = item
            so = f's_add_u32 s{S_T}, s{S_XB}, {hx*65536 + s_*128}'; vd = V_DX; sr = SRD_X
        else:
            _, u, s_ = item; k = kinds[u]
            so = f's_add_u32 s{S_T}, s{S_UB+u}, {s_*64*ustride[k]}'; vd = uvd[k]; sr = usrd[k]
        def last(e):
            ring.seq[item] = e.I(f'buffer_load_dwordx4 v{vd+1}, s[{sr}:{sr+3}], s{S_T} offen offset:1024 lds')
        return [so, f's_add_u32 m0, s{S_W2K}, {sl*SLOT}',
                f'buffer_load_dwordx4 v{vd}, s[{sr}:{sr+3}], s{S_T} offen lds', last]

    def refill():
        ops = []
        while ring.next < len(ring.items):
            it = ring.items[ring.next]
            if ring.alloc(it) is None: break
            ring.next += 1
            ops += dma_item_ops(it)
        return ops
    def release(items):
        for it in items: ring.free.append(ring.slot[it])

    def wread(u, t, dst):
        sl = ring.slot[('w', u, t >> 2)]
        base = sl * SLOT + (t & 3) * 2048
        out = []
        for rd in range(2):
            ad = base + rd * 512
            out.append(f'ds_read_b64_tr_b16 v[{dst+2*rd}:{dst+2*rd+1}], v{V_WR + (ad >> 16)} offset:{ad & 0xffff}')
        return out
    def xread(t):
        sl0 = ring.slot[('x', 0, t >> 2)]
        return [f'ds_read_b128 a[{xa(rbk,t)}:{xa(rbk,t)+3}], v{V_XR + (t & 3)} offset:{sl0*SLOT + rbk*4096}' for rbk in range(2)]
    def sread(t):
        sl0 = ring.slot[('x', 0, t >> 2)]
        rbk = t & 1
        return [f'ds_read_b128 v[{V_SF+4*rbk}:{V_SF+4*rbk+3}], v{V_XS + ((t & 3) >> 1)} offset:{sl0*SLOT + rbk*4096}']
    def stat_valu():
        out = []
        for rbk in range(2):
            st = V_ST + 4 * rbk
            for d in range(4):
                src = V_SF + 4 * rbk + d
                lo = V_UN + 2 * d; hi = lo + 1
                out += [f'v_lshlrev_b32 v{lo}, 16, v{src}', f'v_and_b32 v{hi}, s{S_MASK}, v{src}',
                        f'v_add_f32 v{st}, v{st}, v{lo}', f'v_add_f32 v{st+1}, v{st+1}, v{hi}',
                        f'v_fma_f32 v{st+2}, v{lo}, v{lo}, v{st+2}', f'v_fma_f32 v{st+3}, v{hi}, v{hi}, v{st+3}']
        return out
    def mm(u, slot, rbk, t, wf):
        d = acc(slot, rbk)
        c = '0' if t == 0 else f'v[{d}:{d+15}]'
        X = f'a[{xa(rbk,t)}:{xa(rbk,t)+3}]'; W = f'v[{wf}:{wf+3}]'
        A, B = (X, W) if isV[u] else (W, X)
        return f'v_mfma_f32_32x32x16_bf16 v[{d}:{d+15}], {A}, {B}, {c}'
    lbl = [0]
    def colsum_mfma(e, t, lst):
        L = f'{pfx}_cs{lbl[0]}'; lbl[0] += 1
        e.I(f's_cmp_lg_u32 s{S_RH}, {t & 1}')
        e.I(f's_cbranch_scc1 {L}')
        st = e.cond_begin()
        for ci, wf in lst:
            cs = CSREG[ci]
            c = '0' if t < 2 else f'v[{cs}:{cs+3}]'
            e.I(f'v_mfma_f32_16x16x32_bf16 v[{cs}:{cs+3}], v[{V_SEL}:{V_SEL+3}], v[{wf}:{wf+3}], {c}')
        e.pad8()
        e.cond_end(st)
        e.label(L)
    def sync(e, need):
        e.wait(lgkm=0)
        e.wait_vm_seq(max(ring.seq[i] for i in need))
        e.barrier()
    BAR = lambda e: (e.wait(lgkm=0), e.barrier())

    def w2prep_dma(e):
        e.I('s_cmp_ge_u32 s2, 144')
        e.I(f's_cbranch_scc1 {pfx}_w2a')
        st = e.cond_begin()
        e.I(f's_lshl_b32 s{S_T}, s2, 14')
        e.I(f's_lshl_b32 s{S_T3}, s{S_WAVE}, 12')
        e.I(f's_add_u32 m0, s{S_T3}, {W2P}')
        e.I('s_cmp_ge_u32 s2, 112')
        e.I(f's_cbranch_scc1 {pfx}_w2o')
        for i in range(4):
            e.I(f'buffer_load_dwordx4 v{V_W2D}, s[{SRD_WD}:{SRD_WD+3}], s{S_T} offen offset:{i*1024} lds')
            e.I(f's_add_u32 s{S_T}, s{S_T}, {4096 - 1024}')
        e.I(f's_branch {pfx}_w2a')
        e.pad8()
        e.label(f'{pfx}_w2o')
        e.I(f's_sub_u32 s{S_T}, s{S_T}, {112*16384}')
        for i in range(4):
            e.I(f'buffer_load_dwordx4 v{V_W2D}, s[{SRD_WO}:{SRD_WO+3}], s{S_T} offen offset:{i*1024} lds')
            e.I(f's_add_u32 s{S_T}, s{S_T}, {4096 - 1024}')
        e.pad8()
        e.cond_end(st)
        e.label(f'{pfx}_w2a')
    def w2prep_proc(e):
        e.I('s_cmp_ge_u32 s2, 144')
        e.I(f's_cbranch_scc1 {pfx}_w2b')
        st = e.cond_begin()
        T = V_UN
        for q in range(4):
            for rd in range(2):
                e.I(f'ds_read_b64_tr_b16 v[{V_SF+4*q+2*rd}:{V_SF+4*q+2*rd+1}], v{V_W2R} offset:{q*64 + rd*2048}')
        e.I(f's_mul_i32 s{S_T}, s{S_WAVE}, {4*144}')
        e.I(f's_add_u32 s{S_T}, s{S_T}, s2')
        e.I(f's_lshl_b32 s{S_T}, s{S_T}, 10')
        e.I(f's_add_u32 s{S_T}, s{S_T}, {W2F}')
        e.wait(lgkm=0)
        for q in range(4):
            e.I(f'buffer_store_dwordx4 v[{V_SF+4*q}:{V_SF+4*q+3}], v{V_L16}, s[{SRD_WS}:{SRD_WS+3}], s{S_T} offen')
            if q < 3: e.I(f's_add_u32 s{S_T}, s{S_T}, {144*1024}')
        e.nop(2)
        e.pad8()
        e.cond_end(st)
        e.label(f'{pfx}_w2b')

    for op in refill(): run(e, op)
    w2prep_dma(e)
    for i in range(8): e.I(f'v_mov_b32 v{V_ST+i}, 0')
    for i in (1, 2, 3, 5, 6, 7): e.I(f'v_mov_b32 v{V_XAUG+i}, 0')
    for g in range(3):
        for i in (1, 2, 3): e.I(f'v_mov_b32 v{V_WAUG+4*g+i}, 0')

    st_items = lambda s_: [('x', 0, s_), ('x', 1, s_), ('w', 0, s_), ('w', 1, s_), ('w', 2, s_)]
    e.wait_vm_seq(max(ring.seq[i] for i in st_items(0)))
    e.barrier()
    wfA = lambda blk, t: V_WF + ((t & 1) * 3 + blk) * 4
    def LA(t):
        out = wread(0, t, wfA(0, t)) + xread(t) + wread(1, t, wfA(1, t)) + wread(2, t, wfA(2, t))
        out += sread(t)
        return out
    for op in LA(0): run(e, op)

    for t in range(32):
        s_ = t >> 2
        mf = [mm(blk, blk, rbk, t, wfA(blk, t)) for blk in range(3) for rbk in range(2)]
        sv = stat_valu(); sv = sv[:24] if t % 2 == 0 else sv[24:]
        cs = lambda e, t=t: colsum_mfma(e, t, [(b, wfA(b, t)) for b in range(3)])
        if (t & 3) != 3:
            interleave(e, mf + [cs], LA(t + 1) + sv)
        else:
            need = st_items(s_ + 1) if t < 31 else [('w', 3, 0), ('w', 3, 1)]
            interleave(e, mf[:2], sv[:8])
            sync(e, need)
            release(st_items(s_))
            rf = refill()
            nxt = LA(t + 1) if t < 31 else wread(3, 0, V_WF)
            interleave(e, mf[2:] + [cs], nxt + sv[8:] + rf)

    def stats_write():
        out = []
        for rbk in range(2):
            st = V_ST + 4 * rbk
            out += [f'v_add_f32 v{st}, v{st}, v{st+1}', f'v_add_f32 v{st+1}, v{st+2}, v{st+3}',
                    f'ds_write_b64 v{V_XCS}, v[{st}:{st+1}] offset:{rbk*1024}']
        return out
    def cs_write(ci, region):
        return [f'ds_write_b32 v{V_XCC}, v{CSREG[ci]} offset:{XCH_CS + region*1024 - 0x20000}']
    def stats_fin():
        out = []
        for rbk in range(2):
            t0 = V_SF
            out += [f'ds_read_b128 v[{t0}:{t0+3}], v{V_XCR} offset:{rbk*1024}',
                    f'ds_read_b128 v[{t0+4}:{t0+7}], v{V_XCR} offset:{rbk*1024+16}',
                    f'v_add_f32 v{t0}, v{t0}, v{t0+2}', f'v_add_f32 v{t0+1}, v{t0+1}, v{t0+3}',
                    f'v_add_f32 v{t0+4}, v{t0+4}, v{t0+6}', f'v_add_f32 v{t0+5}, v{t0+5}, v{t0+7}',
                    f'v_add_f32 v{t0}, v{t0}, v{t0+4}', f'v_add_f32 v{t0+1}, v{t0+1}, v{t0+5}',
                    f'v_mul_f32 v{t0}, s{S_INV512}, v{t0}',
                    f'v_mul_f32 v{t0+1}, s{S_INV512}, v{t0+1}',
                    f'v_fma_f32 v{t0+1}, -v{t0}, v{t0}, v{t0+1}',
                    f'v_max_f32 v{t0+1}, 0, v{t0+1}',
                    f'v_cvt_pk_bf16_f32 v{t0+2}, v{t0}, v{t0+1}',
                    f'v_and_b32 v{t0+1}, s{S_MASK}, v{t0+2}',
                    f'v_lshlrev_b32 v{t0}, 16, v{t0+2}',
                    f'v_add_f32 v{t0+1}, 0x3727c5ac, v{t0+1}',
                    f'v_cvt_pk_bf16_f32 v{t0+1}, v{t0+1}, v{t0+1}',
                    f'v_and_b32 v{t0+1}, s{S_MASK}, v{t0+1}',
                    f'v_sqrt_f32 v{t0+1}, v{t0+1}',
                    f'v_cvt_pk_bf16_f32 v{t0+1}, v{t0+1}, v{t0+1}',
                    f'v_and_b32 v{V_IRS+rbk}, s{S_MASK}, v{t0+1}',
                    f'v_rcp_f32 v{V_RST+rbk}, v{V_IRS+rbk}',
                    f'v_mul_f32 v{t0}, v{t0}, v{V_NEGHF}',
                    f'v_mul_f32 v{V_NRL+rbk}, 0x{f2u(-LOG2E):08x}, v{V_RST+rbk}',
                    f'v_mul_f32 v{V_RSQ+rbk}, s{S_QSC}, v{V_RST+rbk}',
                    f'v_cvt_pk_bf16_f32 v{V_XAUG+4*rbk}, v{t0}, v{t0}']
            if typ == 'B':
                out += [f'ds_write_b32 v{V_RSW}, v{V_RST+rbk} offset:{rbk*128}']
        return out
    def waug_build(region, g):
        w = V_WAUG + 4 * g
        t0 = V_UN + 2 * g
        return [f'ds_read_b64 v[{t0}:{t0+1}], v{V_CSR} offset:{XCH_CS + region*1024 - 0x20000}',
                f'v_add_f32 v{t0}, v{t0}, v{t0+1}',
                f'v_cvt_pk_bf16_f32 v{t0+1}, v{t0}, v{t0}',
                f'v_and_b32 v{t0+1}, s{S_MASK}, v{t0+1}',
                f'v_sub_f32 v{t0+1}, v{t0}, v{t0+1}',
                f'v_cvt_pk_bf16_f32 v{w}, v{t0}, v{t0+1}']
    def aug_mm(u, slot, g):
        out = []
        for rbk in range(2):
            d = acc(slot, rbk)
            X = f'v[{V_XAUG+4*rbk}:{V_XAUG+4*rbk+3}]'; W = f'v[{V_WAUG+4*g}:{V_WAUG+4*g+3}]'
            A, B = (X, W) if isV[u] else (W, X)
            out.append(f'v_mfma_f32_32x32x16_bf16 v[{d}:{d+15}], {A}, {B}, v[{d}:{d+15}]')
        return out
    def epi_gu(sg, su, sout):
        out = []
        for rbk in range(2):
            G = acc(sg, rbk); Ur = acc(su, rbk)
            for q in range(4):
                ix = range(4 * q, 4 * q + 4)
                out += [f'v_mul_f32 v{G+i}, v{G+i}, v{V_NRL+rbk}' for i in ix]
                out += [f'v_exp_f32 v{G+i}, v{G+i}' for i in ix]
                out += [f'v_fma_f32 v{G+i}, v{G+i}, v{V_IRS+rbk}, v{V_IRS+rbk}' for i in ix]
                out += [f'v_rcp_f32 v{G+i}, v{G+i}' for i in ix]
                out += [f'v_mul_f32 v{Ur+i}, v{Ur+i}, v{G+i}' for i in ix]
                if q % 2 == 1:
                    t2 = q // 2; b = 8 * t2
                    out += [f'v_cvt_pk_bf16_f32 v{G+b+j}, v{Ur+b+2*j}, v{Ur+b+2*j+1}' for j in range(4)]
                    out.append(f'buffer_store_dwordx4 v[{G+b}:{G+b+3}], v{V_L16}, s[{SRD_WS}:{SRD_WS+3}], s{sout+rbk} offen offset:{t2*1024}')
        return out
    def epi_qk(sl, sout):
        out = []
        for rbk in range(2):
            D = acc(sl, rbk)
            for hd in range(2):
                b = D + 8 * hd
                out += [f'v_mul_f32 v{b+i}, v{b+i}, v{V_RSQ+rbk}' for i in range(8)]
                out += [f'v_cvt_pk_bf16_f32 v{b+j}, v{b+2*j}, v{b+2*j+1}' for j in range(4)]
                out.append(f'buffer_store_dwordx4 v[{b}:{b+3}], v{V_L16}, s[{SRD_WS}:{SRD_WS+3}], s{sout+hd} offen offset:{rbk*1024}')
        return out
    def epi_v(sl, sout):
        out = []
        for rbk in range(2):
            D = acc(sl, rbk); T = V_SF
            for j in range(4):
                out.append(f'ds_read_b128 v[{T+4*j}:{T+4*j+3}], v{V_RSR} offset:{rbk*128 + j*32}')
            out += [f'v_mul_f32 v{D+i}, v{D+i}, v{T+i}' for i in range(16)]
            for t2 in range(2):
                b = D + 8 * t2
                out += [f'v_cvt_pk_bf16_f32 v{b+j}, v{b+2*j}, v{b+2*j+1}' for j in range(4)]
                out.append(f'buffer_store_dwordx4 v[{b}:{b+3}], v{V_VST}, s[{SRD_WS}:{SRD_WS+3}], s{sout} offen offset:{rbk*1024 + t2*512}')
        return out

    def single_phase(u, slot, extra, csidx):
        NB = 6
        wfS = lambda t: V_WF + (t % NB) * 4
        per = (len(extra) + 29) // 30
        pos = 0
        for t in range(32):
            mf = [mm(u, slot, rbk, t, wfS(t)) for rbk in range(2)]
            cs = lambda e, t=t: colsum_mfma(e, t, [(csidx, wfS(t))])
            ex = extra[pos:pos + per]; pos += per
            if (t & 7) != 7:
                interleave(e, mf + [cs], wread(u, t + 1, wfS(t + 1)) + ex)
            else:
                cur = [('w', u, (t >> 2) - 1), ('w', u, t >> 2)]
                if t < 31: need = [('w', u, (t >> 2) + 1), ('w', u, (t >> 2) + 2)]; nx = lambda: wread(u, t + 1, wfS(t + 1))
                elif u == 3: need = [('w', 4, 0), ('w', 4, 1)]; nx = lambda: wread(4, 0, V_WF)
                else: need = None
                run(e, mf[0])
                rf = []; nxl = []
                if need:
                    sync(e, need); release(cur); rf = refill(); nxl = nx()
                interleave(e, mf[1:] + [cs], nxl + ex + rf)
        assert pos >= len(extra)

    exB = stats_write() + cs_write(0, 0) + cs_write(1, 1) + cs_write(2, 2) + [BAR]
    exB += stats_fin() + waug_build(0, 0) + waug_build(1, 1) + waug_build(2, 2)
    if typ == 'B': exB += [BAR]
    exB += aug_mm(0, 0, 0) + aug_mm(1, 1, 1) + aug_mm(2, 2, 2)
    exB += [w2prep_proc]
    exB += epi_gu(0, 1, S_OUT)
    if typ == 'B': exB += epi_v(2, S_OUT + 2)
    single_phase(3, 3, exB, 3)

    exC = cs_write(3, 0) + [BAR] + waug_build(0, 0) + aug_mm(3, 3, 0) + ['s_nop 7', 's_nop 3']
    if typ == 'A': exC += epi_gu(2, 3, S_OUT + 2)
    else: exC += epi_v(3, S_OUT + 3)
    single_phase(4, 0, exC, 0)

    for op in cs_write(0, 1) + [BAR] + waug_build(1, 1) + aug_mm(4, 0, 1) + epi_qk(0, S_OUT + 4): run(e, op)
    e.I('s_endpgm')

def gen_k1():
    e = Emit()
    k1_prologue(e)
    k1_body(e, 'A')
    e.pad8()
    e.label('K1_TYPEB')
    e.lgkm = e.lgkm_done = 0; e.vm = e.vm_done = 0; e.pend = {}; e.window = []; e.alt = []; e.alt_ages = []
    k1_body(e, 'B')
    e.label('K1_END')
    e.I('s_endpgm')
    return e

if __name__ == '__main__':
    e = gen_k1()
    print(e.off, e.stats, e.nnop)
```

```python
from emit import *
from k1 import QF, VF, AF, W2F, FLAGS, WS_BYTES, srd, run, interleave, f2u

KA = 64
A_SRD = 8
A_MASK = 36
def lane_mask(i):
    m = 0
    for l in range(64):
        hf = l >> 5; a_ = l & 31
        b = 8 * (i >> 2) + 4 * hf + (i & 3)
        if b <= a_: m |= 1 << l
    return m

VK = 8
VV = 48
VQ = 128
VS = 136
VP = 184
VO = 200
VC = 216
VPM = 232
VM = 240
V_L16 = 1; V_INV = 2; V_VLD = 3; V_KSEL = 4

def attn_setup(e, s_head, s_rt, S0):
    sK, sV, sT, sOne, sKb = S0, S0 + 1, S0 + 2, S0 + 3, S0 + 4
    e.I('v_and_b32 v5, 63, v0')
    e.I(f'v_lshlrev_b32 v{V_L16}, 4, v5')
    e.I('v_lshrrev_b32 v6, 5, v5')
    e.I(f'v_lshlrev_b32 v{V_INV}, 9, v6')
    e.I('v_and_b32 v7, 15, v5')
    e.I('v_lshlrev_b32 v7, 4, v7')
    e.I(f'v_lshl_add_u32 v{V_VLD}, v6, 8, v7')
    e.I(f's_lshl_b32 s{sT}, s{s_head}, 16')
    e.I(f's_lshl_b32 s{sKb}, s{s_rt}, 11')
    e.I(f's_add_u32 s{sQ(S0)}, s{sT}, s{sKb}')
    if QF: e.I(f's_add_u32 s{sQ(S0)}, s{sQ(S0)}, {QF}')
    e.I(f'buffer_load_dwordx4 v[{VQ}:{VQ+3}], v{V_L16}, s[{A_SRD}:{A_SRD+3}], s{sQ(S0)} offen')
    e.I(f'buffer_load_dwordx4 v[{VQ+4}:{VQ+7}], v{V_L16}, s[{A_SRD}:{A_SRD+3}], s{sQ(S0)} offen offset:1024')
    e.I(f's_add_u32 s{sK}, s{sT}, {QF + 32*65536}')
    e.I(f's_add_u32 s{sV}, s{sT}, {VF}')
    e.I(f's_sub_u32 s{sKb}, s{sKb}, 8192')
    for j in range(10):
        e.I(f's_cmp_ge_i32 s{sKb}, 0')
        e.I('s_cselect_b64 vcc, -1, 0')
        e.I(f's_cselect_b32 s{sT}, s{sKb}, 0')
        e.I(f's_add_u32 s{sT}, s{sT}, s{sK}')
        e.I(f'v_cndmask_b32 v{V_KSEL}, v{V_INV}, v{V_L16}, vcc')
        e.I(f'buffer_load_dwordx4 v[{VK+4*j}:{VK+4*j+3}], v{V_KSEL}, s[{A_SRD}:{A_SRD+3}], s{sT} offen')
        e.I(f's_add_u32 s{sKb}, s{sKb}, 1024')
    e.I(f's_sub_u32 s{sKb}, s{sKb}, 10240')
    for j in range(10):
        e.I(f's_cmp_ge_i32 s{sKb}, 0')
        e.I(f's_cselect_b32 s{sOne}, 0x3f803f80, 0')
        e.I(f's_add_u32 s{sT}, s{sKb}, s{sV}')
        e.I(f's_cmp_ge_i32 s{sKb}, 0')
        e.I(f's_cselect_b32 s{sT}, s{sT}, 0x7ff00000')
        for r in range(8): e.I(f'v_mov_b32 v{VV+8*j+r}, s{sOne}')
        e.I('s_mov_b32 exec_lo, 0xffff')
        e.I('s_mov_b32 exec_hi, 0xffff')
        for t in range(2):
            e.I(f'buffer_load_dwordx4 v[{VV+8*j+4*t}:{VV+8*j+4*t+3}], v{V_VLD}, s[{A_SRD}:{A_SRD+3}], s{sT} offen offset:{t*512}')
        e.I('s_mov_b64 exec, -1')
        e.I(f's_add_u32 s{sKb}, s{sKb}, 1024')
    for i in range(16):
        m = lane_mask(i)
        e.I(f's_mov_b32 s{A_MASK+2*i}, 0x{m & 0xffffffff:08x}')
        e.I(f's_mov_b32 s{A_MASK+2*i+1}, 0x{m >> 32:08x}')
    e.I(f'v_mov_b32 v{VM}, 0xffff')
    e.I(f'v_mov_b32 v{VM+1}, 0xffff0000')
    for jj in range(8):
        e.I(f'v_cndmask_b32 v{VPM+jj}, 0, v{VM}, s[{A_MASK+4*jj}:{A_MASK+4*jj+1}]')
        e.I(f'v_cndmask_b32 v{VM+2}, 0, v{VM+1}, s[{A_MASK+4*jj+2}:{A_MASK+4*jj+3}]')
        e.I(f'v_or_b32 v{VPM+jj}, v{VPM+jj}, v{VM+2}')

def sQ(S0): return S0 + 5

def attn_task(e, j0, q, s_out):
    K = lambda j: f'v[{VK+4*(j0+j)}:{VK+4*(j0+j)+3}]'
    Vf = lambda j, t: f'v[{VV+8*(j0+j)+4*t}:{VV+8*(j0+j)+4*t+3}]'
    Q = f'v[{VQ+4*q}:{VQ+4*q+3}]'
    S = lambda b: VS + 16 * b
    Sr = lambda b: f'v[{S(b)}:{S(b)+15}]'
    m0, m1 = VM, VM + 1
    def smm(j, b, c): return f'v_mfma_f32_32x32x16_bf16 {Sr(b)}, {K(j)}, {Q}, {c}'
    def merge(ba, bb):
        return [f'v_cndmask_b32 v{S(bb)+i}, v{S(ba)+i}, v{S(bb)+i}, s[{A_MASK+2*i}:{A_MASK+2*i+1}]' for i in range(16)]
    def maxes(b, first=False):
        out = []
        for i in range(8):
            m = m0 if i % 2 == 0 else m1
            if first and i < 2: out.append(f'v_max_f32 v{m}, v{S(b)+2*i}, v{S(b)+2*i+1}')
            else: out.append(f'v_max3_f32 v{m}, v{S(b)+2*i}, v{S(b)+2*i+1}, v{m}')
        return out
    e.I(smm(0, 0, '0')); e.I(smm(8, 1, '0')); e.I(smm(1, 2, '0'))
    for op in merge(0, 1): e.I(op)
    e.I(smm(2, 0, '0'))
    for op in maxes(1, True): e.I(op)
    cur = 2
    bufs = {1: 2, 2: 0}
    for j in range(1, 8):
        if j + 2 <= 7:
            nb = [b for b in range(3) if b not in (bufs[j], bufs[j + 1])][0]
            bufs[j + 2] = nb
            e.I(smm(j + 2, nb, '0'))
        for op in maxes(bufs[j]): e.I(op)
    e.I(f'v_max_f32 v{m0}, v{m0}, v{m1}')
    e.I(f'v_mov_b32 v{m1}, v{m0}')
    e.I(f'v_permlane32_swap_b32 v{m0}, v{m1}')
    e.I(f'v_max_f32 v{m0}, v{m0}, v{m1}')
    for i in range(16): e.I(f'v_sub_f32 v{VC+i}, 0, v{m0}')
    C = f'v[{VC}:{VC+15}]'
    O = f'v[{VO}:{VO+15}]'
    def expcvt(b, p):
        out = []
        for g in range(2):
            out += [f'v_exp_f32 v{S(b)+8*g+i}, v{S(b)+8*g+i}' for i in range(8)]
            out += [f'v_cvt_pk_bf16_f32 v{p+4*g+i}, v{S(b)+8*g+2*i}, v{S(b)+8*g+2*i+1}' for i in range(4)]
        return out
    first = [True]
    def pv(j, p):
        out = []
        for t in range(2):
            c = '0' if first[0] else O
            first[0] = False
            out.append(f'v_mfma_f32_32x32x16_bf16 {O}, {Vf(j,t)}, v[{p+4*t}:{p+4*t+3}], {c}')
        return out
    e.I(smm(0, 0, C)); e.I(smm(8, 1, C)); e.I(smm(1, 2, C))
    for op in merge(0, 1): e.I(op)
    e.I(smm(2, 0, C))
    P0, P1 = VP, VP + 8
    for op in expcvt(1, P0): e.I(op)
    for i in range(8): e.I(f'v_bfi_b32 v{P1+i}, v{VPM+i}, 0, v{P0+i}')
    for i in range(8): e.I(f'v_and_b32 v{P0+i}, v{VPM+i}, v{P0+i}')
    for op in pv(0, P1) + pv(8, P0): e.I(op)
    bufs = {1: 2, 2: 0}
    for j in range(1, 8):
        if j + 2 <= 7:
            nb = [b for b in range(3) if b not in (bufs[j], bufs[j + 1])][0]
            bufs[j + 2] = nb
            e.I(smm(j + 2, nb, C))
        p = P0 if j % 2 else P1
        for op in expcvt(bufs[j], p): e.I(op)
        for op in pv(j, p): e.I(op)
    e.I(f'v_rcp_f32 v{m0}, v{VO+8}')
    for i in range(8): e.I(f'v_mul_f32 v{VO+i}, v{VO+i}, v{m0}')
    for i in range(4): e.I(f'v_cvt_pk_bf16_f32 v{VO+i}, v{VO+2*i}, v{VO+2*i+1}')
    e.I(f'buffer_store_dwordx4 v[{VO}:{VO+3}], v{V_L16}, s[{A_SRD}:{A_SRD+3}], s{s_out} offen')

def gen_attn():
    e = Emit()
    e.I('s_cmp_ge_u32 s2, 256')
    e.I('s_cbranch_scc1 K2A_END')
    e.I(f's_load_dwordx2 s[{KA}:{KA+1}], s[0:1], 72')
    e.I('v_lshrrev_b32 v2, 6, v0')
    e.I('s_nop 0')
    e.I('v_readfirstlane_b32 s4, v2')
    e.I('s_lshr_b32 s5, s2, 3')
    e.I('s_and_b32 s6, s2, 7')
    e.I('s_lshl_b32 s6, s6, 2')
    e.I('s_add_u32 s6, s6, s4')
    e.smem_wait()
    srd(e, A_SRD, KA, WS_BYTES)
    attn_setup(e, 6, 5, 70)
    e.I('s_mul_i32 s80, s5, 288')
    e.I('s_add_u32 s80, s80, s6')
    e.I('s_add_u32 s80, s80, 112')
    e.I('s_lshl_b32 s80, s80, 10')
    e.I(f's_add_u32 s80, s80, {AF}')
    e.I(f's_add_u32 s81, s80, {144*1024}')
    attn_task(e, 0, 0, 80)
    attn_task(e, 1, 1, 81)
    e.label('K2A_END')
    e.I('s_endpgm')
    return e

G_SRD = 8; G_OUT = 12; G_X = 16
K2B_LDS = 4 * 64 * 272
def gen_gemm3():
    e = Emit()
    e.I('s_cmp_ge_u32 s2, 256')
    e.I('s_cbranch_scc1 K2B_END')
    e.I(f's_load_dwordx2 s[{KA}:{KA+1}], s[0:1], 72')
    e.I(f's_load_dwordx2 s[{KA+2}:{KA+3}], s[0:1], 56')
    e.I(f's_load_dwordx2 s[{KA+4}:{KA+5}], s[0:1], 0')
    e.I('v_lshrrev_b32 v2, 6, v0')
    e.I('v_and_b32 v5, 63, v0')
    e.I('v_readfirstlane_b32 s4, v2')
    e.I('s_lshr_b32 s5, s2, 3')
    e.I('s_and_b32 s6, s2, 7')
    e.I('v_lshlrev_b32 v1, 4, v5')
    e.I(f'v_add_u32 v2, {144*1024}, v1')
    e.smem_wait()
    srd(e, G_SRD, KA, WS_BYTES)
    srd(e, G_OUT, KA + 2, 2048 * 1024)
    srd(e, G_X, KA + 4, 2048 * 1024)
    e.I('s_mul_i32 s20, s5, 288'); e.I('s_lshl_b32 s20, s20, 10'); e.I(f's_add_u32 s20, s20, {AF}')
    e.I('s_mul_i32 s21, s6, 288'); e.I('s_lshl_b32 s21, s21, 10'); e.I(f's_add_u32 s21, s21, {W2F}')
    e.I('s_mul_i32 s22, s4, 28'); e.I('s_lshl_b32 s22, s22, 10')
    e.I('s_lshl_b32 s23, s4, 3'); e.I('s_add_u32 s23, s23, 112'); e.I('s_lshl_b32 s23, s23, 10')
    e.I('s_add_u32 s24, s20, s22'); e.I('s_add_u32 s25, s21, s22')
    e.I('s_add_u32 s26, s20, s23'); e.I('s_add_u32 s27, s21, s23')
    NB = 8
    VB = 64
    ACC = 0 + 192
    def loads(i):
        b = VB + 16 * (i % NB)
        if i < 28: sa, sw, k = 24, 25, i
        else: sa, sw, k = 26, 27, i - 28
        out = []
        if k % 4 == 0 and k > 0:
            out += [f's_add_u32 s{sa}, s{sa}, 4096', f's_add_u32 s{sw}, s{sw}, 4096']
        im = (k % 4) * 1024
        out += [f'buffer_load_dwordx4 v[{b}:{b+3}], v1, s[{G_SRD}:{G_SRD+3}], s{sw} offen offset:{im}',
                f'buffer_load_dwordx4 v[{b+8}:{b+11}], v1, s[{G_SRD}:{G_SRD+3}], s{sa} offen offset:{im}',
                f'buffer_load_dwordx4 v[{b+4}:{b+7}], v2, s[{G_SRD}:{G_SRD+3}], s{sw} offen offset:{im}',
                f'buffer_load_dwordx4 v[{b+12}:{b+15}], v2, s[{G_SRD}:{G_SRD+3}], s{sa} offen offset:{im}']
        return out
    for i in range(NB):
        for op in loads(i): e.I(op)
    for i in range(36):
        b = VB + 16 * (i % NB)
        for cbk in range(2):
            for rbk in range(2):
                d = ACC + 16 * (cbk * 2 + rbk)
                c = '0' if i == 0 else f'v[{d}:{d+15}]'
                e.I(f'v_mfma_f32_32x32x16_bf16 v[{d}:{d+15}], v[{b+4*cbk}:{b+4*cbk+3}], v[{b+8+4*rbk}:{b+8+4*rbk+3}], {c}')
        if i + NB < 36:
            for op in loads(i + NB): e.I(op)
    e.I('v_and_b32 v3, 31, v5')
    e.I('v_lshrrev_b32 v4, 5, v5')
    e.I('s_mov_b32 s30, 272')
    e.I('v_mul_lo_u32 v3, v3, s30')
    e.I('v_lshl_add_u32 v3, v4, 4, v3')
    e.I('s_mul_i32 s31, s4, 17408')
    e.I('v_add_u32 v3, s31, v3')
    e.I('v_lshrrev_b32 v6, 2, v0')
    e.I('v_and_b32 v7, 3, v0')
    e.I('s_lshl_b32 s32, s5, 16')
    e.I('s_lshl_b32 s33, s6, 7')
    e.I('s_add_u32 s32, s32, s33')
    e.I('v_lshlrev_b32 v8, 10, v6')
    e.I('v_lshl_add_u32 v8, v7, 5, v8')
    e.I(f'buffer_load_dwordx4 v[16:19], v8, s[{G_X}:{G_X+3}], s32 offen')
    e.I(f'buffer_load_dwordx4 v[20:23], v8, s[{G_X}:{G_X+3}], s32 offen offset:16')
    for cbk in range(2):
        for rbk in range(2):
            d = ACC + 16 * (cbk * 2 + rbk)
            for j in range(4):
                e.I(f'ds_write_b128 v3, v[{d+4*j}:{d+4*j+3}] offset:{rbk*32*272 + cbk*128 + j*32}')
    e.wait(lgkm=0)
    e.barrier()
    e.I('v_mul_lo_u32 v9, v6, s30')
    e.I('v_lshl_add_u32 v9, v7, 6, v9')
    for w in range(4):
        for q in range(4):
            e.I(f'ds_read_b128 v[{64+16*w+4*q}:{64+16*w+4*q+3}], v9 offset:{w*17408 + q*16}')
    for i in range(16):
        e.I(f'v_add_f32 v{64+i}, v{64+i}, v{80+i}')
        e.I(f'v_add_f32 v{96+i}, v{96+i}, v{112+i}')
    for i in range(16):
        e.I(f'v_add_f32 v{64+i}, v{64+i}, v{96+i}')
    for d in range(8):
        e.I(f'v_lshlrev_b32 v{32+2*d}, 16, v{16+d}')
        e.I(f'v_and_b32 v{33+2*d}, 0xffff0000, v{16+d}')
    for i in range(16):
        e.I(f'v_add_f32 v{64+i}, v{64+i}, v{32+i}')
    for d in range(8):
        e.I(f'v_cvt_pk_bf16_f32 v{16+d}, v{64+2*d}, v{65+2*d}')
    e.I(f'buffer_store_dwordx4 v[16:19], v8, s[{G_OUT}:{G_OUT+3}], s32 offen')
    e.I(f'buffer_store_dwordx4 v[20:23], v8, s[{G_OUT}:{G_OUT+3}], s32 offen offset:16')
    e.label('K2B_END')
    e.I('s_endpgm')
    return e

if __name__ == '__main__':
    for g in (gen_attn, gen_gemm3):
        e = g(); print(e.off, e.stats, e.nnop)
```

```python
import sys
sys.path.insert(0, 'gen')
from k1 import gen_k1, K1_LDS
from k2 import gen_attn, gen_gemm3, K2B_LDS
NAME = 'parallel_sum__sliding_block__glu_gated_glu__prompt'
HDR = open(f'cdna_kernels/{NAME}.s.ref').read().split('; Override launch geometry')[0]
def kd(name, vgpr, accum, sgpr=102):
    return f""".amdhsa_kernel {name}
  .amdhsa_next_free_vgpr {vgpr}
  .amdhsa_next_free_sgpr {sgpr}
  .amdhsa_accum_offset {accum}
  .amdhsa_group_segment_fixed_size 0
  .amdhsa_kernarg_size 80
  .amdhsa_user_sgpr_count 2
  .amdhsa_user_sgpr_kernarg_segment_ptr 1
  .amdhsa_system_sgpr_workgroup_id_x 1
.end_amdhsa_kernel
"""
def build(path=None):
    ks = [('k1_kernel', gen_k1(), 256, K1_LDS, 512, 256),
          ('k2a_kernel', gen_attn(), 256, 0, 256, 256),
          ('k2b_kernel', gen_gemm3(), 256, K2B_LDS, 256, 256)]
    out = HDR
    for n, e, blk, lds, vg, ac in ks:
        out += f'; @launch kernel={n} grid=(256,1,1) block=({blk},1,1) lds={lds}\n'
    out += '.amdgcn_target "amdgcn-amd-amdhsa--gfx950"\n.text\n'
    for n, e, blk, lds, vg, ac in ks:
        out += f'.globl {n}\n.p2align 8\n.type {n},@function\n{n}:\n' + e.text()
    out += '.section .rodata,"a"\n'
    for n, e, blk, lds, vg, ac in ks:
        out += '.p2align 6\n' + kd(n, vg, ac)
    path = path or f'cdna_kernels/{NAME}.s'
    open(path, 'w').write(out)
    print('wrote', path, len(out), 'bytes;', {n: e.off for n, e, *_ in ks})
if __name__ == '__main__':
    build(sys.argv[1] if len(sys.argv) > 1 else None)
```

```python
import re

_RANGE = re.compile(r'^([vas])\[(\d+):(\d+)(?:\+(\d+))?\]$')
_SINGLE = re.compile(r'^([vas])(\d+)$')

def expand(op):
    op = op.strip()
    neg = op.lstrip('-')
    if neg.startswith('abs(') or neg.startswith('|'):
        neg = neg.strip('|').replace('abs(', '').rstrip(')')
    m = _RANGE.match(neg)
    if m:
        lo, hi = int(m.group(2)), int(m.group(3))
        return [f"{m.group(1)}{i}" for i in range(lo, hi + 1)]
    m = _SINGLE.match(neg)
    if m:
        return [neg]
    if neg in ('vcc', 'exec', 'm0', 'scc'):
        return [neg]
    if neg in ('vcc_lo', 'vcc_hi'):
        return ['vcc']
    if neg in ('exec_lo', 'exec_hi'):
        return ['exec']
    return []

def R(kind, lo, n=1):
    return f"{kind}{lo}" if n == 1 else f"{kind}[{lo}:{lo+n-1}]"
def v(lo, n=1): return R('v', lo, n)
def a(lo, n=1): return R('a', lo, n)
def s(lo, n=1): return R('s', lo, n)

INLINE_F = {'0.5', '-0.5', '1.0', '-1.0', '2.0', '-2.0', '4.0', '-4.0'}
def is_literal(op):
    op = op.strip()
    if expand(op): return False
    if op in INLINE_F or op in ('off',): return False
    try:
        val = int(op, 0)
    except ValueError:
        try:
            float(op); return True
        except ValueError:
            return False
    return not (-16 <= val <= 64)

TRANS = ('v_exp_f32', 'v_log_f32', 'v_rcp_f32', 'v_rsq_f32', 'v_sqrt_f32', 'v_sin_f32', 'v_cos_f32')
VOP3_ONLY = ('v_fma_f32', 'v_max3_f32', 'v_min3_f32', 'v_med3_f32', 'v_mul_lo_u32', 'v_mul_hi_u32', 'v_lshl_add_u32',
             'v_add_lshl_u32', 'v_add3_u32', 'v_and_or_b32', 'v_bfe_u32', 'v_bfi_b32', 'v_cvt_pk_bf16_f32', 'v_mad_u32_u24',
             'v_lshl_or_b32', 'v_or3_b32', 'v_perm_b32', 'v_pk_', 'v_dot2_', 'v_readlane_b32', 'v_writelane_b32',
             'v_mbcnt', 'v_xad_u32', 'v_alignbit_b32', 'v_accvgpr', 'v_lshlrev_b64', 'v_mad_u64', 'v_ldexp_f32', 'v_cvt_pk_')

class Inst:
    __slots__ = ('text', 'size', 'kind', 'reads', 'writes', 'passes', 'srcc', 'promotable', 'mn')
    def __init__(self, text, size, kind, reads, writes, passes=0, srcc=(), promotable=False, mn=''):
        self.text, self.size, self.kind = text, size, kind
        self.reads, self.writes = set(reads), set(writes)
        self.passes, self.srcc, self.promotable, self.mn = passes, set(srcc), promotable, mn

class Emit:
    def __init__(self, align=True):
        self.ins = []
        self.off = 0
        self.align = align
        self.lgkm = 0
        self.vm = 0
        self.lgkm_done = 0
        self.vm_done = 0
        self.pend = {}
        self.window = []
        self.nnop = 0
        self.stats = {}
        self.alt = []
        self.alt_ages = []

    def _push(self, inst):
        if self.align and inst.size == 8 and self.off % 8 == 4:
            prev = next((p for p in reversed(self.ins) if isinstance(p, Inst)), None)
            if prev is not None and prev is self.ins[-1] and prev.promotable and prev.size == 4:
                prev.text = prev.text.replace(prev.mn + '_e32', prev.mn + '_e64', 1)
                prev.size = 8
                prev.promotable = False
                self.off += 4
            else:
                n = Inst('s_nop 0', 4, 'nop', (), ())
                self.ins.append(n); self._wappend(n); self.off += 4
        self.ins.append(inst)
        self.off += inst.size
        self._wappend(inst)
        self.stats[inst.kind] = self.stats.get(inst.kind, 0) + 1

    def _wappend(self, inst, k=1):
        for _ in range(k):
            self.window.append(inst)
            for w in self.alt: w.append(inst)
        if len(self.window) > 40:
            self.window = self.window[-40:]
        self.alt = [w[-40:] for w in self.alt]
        self.alt_ages = [x + k for x in self.alt_ages]
        keep = [i for i, x in enumerate(self.alt_ages) if x <= 22]
        self.alt = [self.alt[i] for i in keep]; self.alt_ages = [self.alt_ages[i] for i in keep]

    def cond_begin(self):
        return (dict(self.pend), self.lgkm, self.vm, self.lgkm_done, self.vm_done, list(self.window), [list(w) for w in self.alt])

    def cond_end(self, st):
        self.pend, self.lgkm, self.vm, self.lgkm_done, self.vm_done = dict(st[0]), st[1], st[2], st[3], st[4]
        new = [list(st[5])] + [list(w) for w in st[6]][:2]
        self.alt = self.alt[:2] + new
        self.alt_ages = self.alt_ages[:2] + [0] * len(new)

    def nop(self, n):
        while n > 0:
            k = min(n, 16)
            i = Inst(f's_nop {k-1}', 4, 'nop', (), ())
            self.ins.append(i); self.off += 4
            self._wappend(i, k)
            self.nnop += k
            n -= k

    def comment(self, t):
        self.ins.append(f'  ; {t}')

    def label(self, name, drain=True):
        self.ins.append(f'{name}:')

    def raw(self, text, size=4):
        i = Inst(text, size, 'other', (), ())
        self._push(i)

    def wait(self, lgkm=None, vm=None):
        parts = []
        if vm is not None:
            vm = max(0, min(vm, 63)); parts.append(f'vmcnt({vm})')
            self.vm_done = max(self.vm_done, self.vm - vm)
        if lgkm is not None:
            lgkm = max(0, min(lgkm, 15)); parts.append(f'lgkmcnt({lgkm})')
            self.lgkm_done = max(self.lgkm_done, self.lgkm - lgkm)
        if parts:
            self._push(Inst('s_waitcnt ' + ' '.join(parts), 4, 'wait', (), ()))
            self.pend = {r: p for r, p in self.pend.items()
                         if not ((p[0] == 'l' and p[1] < self.lgkm_done) or (p[0] == 'v' and p[1] < self.vm_done))}

    def wait_vm_seq(self, seq):
        if seq >= self.vm_done:
            self.wait(vm=self.vm - seq - 1)
    def wait_lgkm_seq(self, seq):
        if seq >= self.lgkm_done:
            self.wait(lgkm=self.lgkm - seq - 1)

    def _need(self, regs):
        nl = nv = None
        for r in regs:
            p = self.pend.get(r)
            if p is None: continue
            if p[0] == 'l' and p[1] >= self.lgkm_done:
                nl = p[1] if nl is None else max(nl, p[1])
            if p[0] == 'v' and p[1] >= self.vm_done:
                nv = p[1] if nv is None else max(nv, p[1])
        if nl is not None or nv is not None:
            self.wait(lgkm=None if nl is None else self.lgkm - nl - 1, vm=None if nv is None else self.vm - nv - 1)

    def _hazard(self, inst):
        need = 0
        for win in [self.window] + self.alt:
          need = max(need, self._hazard1(inst, win))
        if need: self.nop(need)

    def _hazard1(self, inst, window):
        need = 0
        for d, p in enumerate(reversed(window)):
            if d >= 20: break
            req = 0
            if p.kind in ('valu', 'trans'):
                if inst.kind == 'mfma' and (p.writes & inst.reads): req = max(req, 2)
                if p.kind == 'trans' and inst.kind in ('valu', 'mfma', 'vmem', 'ds') and (p.writes & inst.reads): req = max(req, 1)
                sg = {w for w in p.writes if w[0] == 's' or w == 'vcc'}
                if sg & inst.reads:
                    if inst.kind in ('valu', 'trans'): req = max(req, 2)
                    if inst.kind == 'vmem': req = max(req, 5)
                    if inst.mn in ('v_readlane_b32', 'v_writelane_b32'): req = max(req, 4)
                if inst.mn.startswith('v_permlane') and (p.writes & inst.reads): req = max(req, 2)
                if inst.mn in ('v_readfirstlane_b32', 'v_readlane_b32') and (p.writes & inst.reads): req = max(req, 1)
                if 'exec' in p.writes: req = max(req, 5)
            if p.kind == 'mfma':
                big = {8: 12, 4: 8, 16: 20, 2: 5}[p.passes]
                if inst.kind == 'mfma':
                    ov = p.writes & inst.srcc
                    if ov and (inst.srcc != p.writes or inst.passes != p.passes):
                        req = max(req, big - 2)
                    if p.writes & (inst.reads - inst.srcc): req = max(req, big)
                    if (p.writes & inst.writes) and not (inst.srcc == p.writes): req = max(req, big)
                elif inst.kind in ('valu', 'trans', 'vmem', 'ds'):
                    if p.writes & (inst.reads | inst.writes): req = max(req, big)
                    if inst.kind in ('valu', 'trans') and (p.srcc & inst.writes): req = max(req, {8: 7, 4: 3, 16: 15, 2: 1}[p.passes])
            if p.kind == 'vmem' and p.mn.endswith(('x3', 'x4')) and 'store' in p.mn and inst.kind in ('valu', 'trans'):
                if p.reads & inst.writes: req = max(req, 2)
            if p.kind == 'salu' and 'm0' in p.writes and inst.kind == 'vmem' and 'm0' in inst.reads: req = max(req, 1)
            if req > d: need = max(need, req - d)
        return need

    def I(self, text, **kw):
        text = text.strip()
        parts = text.split(None, 1)
        mn = parts[0]
        rest = parts[1] if len(parts) > 1 else ''
        ops = [o.strip() for o in rest.split(',')] if rest else []
        mods = ''
        if ops:
            last = ops[-1].split()
            ops[-1] = last[0]
            mods = ' '.join(last[1:])
        reads, writes = [], []
        kind = None; size = 4; passes = 0; srcc = (); promotable = False
        ex = [expand(o) for o in ops]
        if mn.startswith('v_mfma'):
            kind = 'mfma'; size = 8
            passes = 8 if '32x32x16' in mn else 4 if '16x16x32' in mn else None
            assert passes
            writes = ex[0]; reads = ex[1] + ex[2] + ex[3]; srcc = ex[3]
        elif mn.startswith('ds_'):
            kind = 'ds'; size = 8
            if mn.startswith('ds_read') or mn.startswith('ds_bpermute') or mn.startswith('ds_swizzle'):
                writes = ex[0]; reads = sum(ex[1:], [])
            else:
                reads = sum(ex, [])
        elif mn.startswith('buffer_') or mn.startswith('global_'):
            kind = 'vmem'; size = 8
            if 'lds' in mods.split():
                reads = sum(ex, []) + ['m0']
            elif 'load' in mn:
                writes = ex[0]; reads = sum(ex[1:], [])
            elif 'atomic' in mn and 'sc0' in mods.split():
                writes = ex[0]; reads = sum(ex, [])
            else:
                reads = sum(ex, [])
        elif mn.startswith('s_load') or mn.startswith('s_memtime') or mn.startswith('s_memrealtime'):
            kind = 'smem'; size = 8
            writes = ex[0]; reads = sum(ex[1:], [])
        elif mn.startswith('s_'):
            kind = 'salu'
            size = 8 if any(is_literal(o) for o in ops) and not mn.startswith(('s_cbranch', 's_branch', 's_nop', 's_setprio', 's_sleep', 's_movk', 's_addk', 's_barrier', 's_endpgm', 's_waitcnt')) else 4
            if mn.startswith('s_cmp') or mn.startswith('s_bitcmp'):
                reads = sum(ex, []); writes = ['scc']
            elif mn.startswith(('s_cbranch', 's_branch', 's_barrier', 's_setprio', 's_sleep', 's_endpgm', 's_nop', 's_waitcnt')):
                reads = []
            elif mn.endswith('saveexec_b64'):
                writes = ex[0] + ['exec', 'scc']; reads = ex[1] + ['exec']
            else:
                writes = ex[0] + ['scc']; reads = sum(ex[1:], [])
                if mn.startswith(('s_addc', 's_cselect', 's_subb')): reads.append('scc')
                if mn.startswith(('s_mov', 's_cselect', 's_getpc', 's_mul_i32', 's_movk')): writes = ex[0]
        elif mn.startswith('v_'):
            base = mn
            kind = 'trans' if base in TRANS else 'valu'
            lit = any(is_literal(o) for o in ops)
            if base.startswith('v_cmp'):
                writes = ex[0]; reads = sum(ex[1:], [])
                e32ok = ops[0] == 'vcc' and bool(_SINGLE.match(ops[2])) and ops[2][0] == 'v'
            elif base.startswith('v_permlane') :
                writes = ex[0] + ex[1]; reads = ex[0] + ex[1]; e32ok = True
            elif base in ('v_readfirstlane_b32',):
                writes = ex[0]; reads = ex[1]; e32ok = True
            else:
                writes = ex[0]; reads = sum(ex[1:], [])
                if base in ('v_fmac_f32', 'v_dot2c_f32_bf16', 'v_writelane_b32'): reads += ex[0]
                if base in ('v_add_co_u32', 'v_addc_co_u32', 'v_sub_co_u32', 'v_subb_co_u32'):
                    writes = ex[0] + ex[1]; reads = sum(ex[2:], [])
                    e32ok = ops[1] == 'vcc' and ops[3][0] == 'v' and _SINGLE.match(ops[3]) is not None and (len(ops) < 5 or ops[4] == 'vcc')
                elif base == 'v_cndmask_b32':
                    e32ok = ops[3] == 'vcc' and bool(_SINGLE.match(ops[2])) and ops[2][0] == 'v'
                elif len(ops) == 2:
                    e32ok = True
                else:
                    e32ok = bool(_SINGLE.match(ops[-1])) and ops[-1][0] == 'v' and len(ops) == 3
            if any(o.startswith('-') and expand(o) for o in ops[1:]) or any('abs(' in o or '|' in o for o in ops) or 'clamp' in mods or 'mul:' in mods or 'div:' in mods or 'op_sel' in mods:
                e32ok = False
            vop3only = base.startswith(VOP3_ONLY)
            if base in ('v_readfirstlane_b32', 'v_dot2c_f32_bf16') or base.startswith('v_permlane') or base.startswith('v_accvgpr'):
                size = 8 if base.startswith('v_accvgpr') else 4
                if base == 'v_dot2c_f32_bf16':
                    pass
            elif vop3only:
                size = 8; assert not lit, text
            elif lit:
                assert e32ok, text
                size = 8; text = text.replace(mn, mn + '_e32', 1)
            elif e32ok:
                size = 4; text = text.replace(mn, mn + '_e32', 1); promotable = True
            else:
                size = 8; text = text.replace(mn, mn + '_e64', 1)
        else:
            raise ValueError(text)
        if 'reads' in kw: reads = list(reads) + kw['reads']
        if 'writes' in kw: writes = list(writes) + kw['writes']
        inst = Inst('  ' + text, size, kind, reads, writes, passes, srcc, promotable, mn)
        self._need(set(reads) | set(writes))
        self._hazard(inst)
        self._push(inst)
        if kind == 'ds':
            for w in writes: self.pend[w] = ('l', self.lgkm)
            self.lgkm += 1
            return self.lgkm - 1
        if kind == 'vmem':
            for w in writes: self.pend[w] = ('v', self.vm)
            self.vm += 1
            return self.vm - 1
        if kind == 'smem':
            for w in writes: self.pend[w] = ('l', self.lgkm + 100)
            self.lgkm += 0
        return None

    def smem_wait(self):
        self._push(Inst('  s_waitcnt lgkmcnt(0)', 4, 'wait', (), ()))
        self.lgkm_done = self.lgkm
        self.pend = {r: p for r, p in self.pend.items() if p[0] != 'l'}

    def stamp(self, idx, srd, s_base, vtmp=(2, 3), stmp=90, vz=3):
        if not getattr(self, 'prof', False): return
        self._push(Inst(f'  s_memtime s[{stmp}:{stmp+1}]', 8, 'other', (), ()))
        self._push(Inst(f'  s_memrealtime s[{stmp+2}:{stmp+3}]', 8, 'other', (), ()))
        self._push(Inst('  s_waitcnt lgkmcnt(0)', 4, 'wait', (), ()))
        self.lgkm_done = self.lgkm
        self.pend = {r: p for r, p in self.pend.items() if p[0] != 'l'}
        self.I(f'v_mov_b32 v{vtmp[0]}, s{stmp}')
        self.I(f'v_mov_b32 v{vtmp[1]}, s{stmp+2}')
        self.I(f'v_mov_b32 v{vz}, 0')
        sv = self.vm
        self.I(f'buffer_store_dwordx2 v[{vtmp[0]}:{vtmp[1]}], v{vz}, s[{srd}:{srd+3}], s{s_base} offen offset:{idx*8}')
        self.vm = sv

    def barrier(self):
        self._push(Inst('  s_barrier', 4, 'salu', (), ()))

    def text(self):
        return '\n'.join(i if isinstance(i, str) else i.text for i in self.ins) + '\n'

    def pad8(self):
        if self.off % 8: self.nop(1)
```

```python
from emit import *
import struct, os

QF = 0
VF = 4 << 20
AF = 6 << 20
W2F = 15 << 20
FLAGS = 18 << 20
WS_BYTES = 20 << 20
PROFB = 19 << 20
PROF = os.environ.get('PROF', '') != ''
ABL = os.environ.get('ABL', '').split(',')

LOG2E = 1.4426950408889634
QSCALE = 0.25 * LOG2E
def f2u(x): return struct.unpack('<I', struct.pack('<f', x))[0]

SLOT = 8192
NSLOT = 20
W2P = 1 * SLOT
XCH = 0
XCH_STAT = XCH
XCH_CS = XCH + 4096
XCH_RS = XCH + 7168
K1_LDS = 163840
K1_THREADS = 256

KA = 64
SRD_X, SRD_QKV, SRD_G, SRD_U, SRD_WS, SRD_WD, SRD_WO = 8, 12, 16, 20, 24, 28, 32
S_UB = 36; S_XB = 41; S_W2K = 42; S_T = 43; S_INV512 = 44; S_RH = 45; S_MASK = 46; S_C = 47
S_OUT = 48
S_ONES = 55; S_QSC = 56; S_WAVE = 57; S_MT = 58; S_P = 59; S_R = 60; S_T2 = 61; S_T3 = 62; S_RH2K = 63

V_DW = 1; V_DQ = 3; V_DX = 5
V_WR = 7
V_L16 = 10; V_VST = 11
V_SEL = 12
V_NRL = 16; V_IRS = 18; V_RSQ = 20; V_RST = 22
V_CS = 24
V_XAUG = 28
V_WAUG = 36
V_XCR = 40; V_XCC = 41; V_CSR = 42; V_RSW = 43; V_RSR = 44; V_NEGHF = 45; V_W2R = 46; V_W2D = 47
V_T = 48
V_CA = 56
V_XR = 60
V_XS = 72
V_ST = 80
V_SF = 88
V_CB = 104
NWB = 10
V_WF = 112
V_ACC = 160
WBUF = [V_WF + 4*i for i in range(NWB)]
def acc(slot, rbk): return V_ACC + (slot * 2 + rbk) * 16
def xa(rbk, t): return (rbk * 32 + t) * 4

def srd(e, d, lo, nbytes):
    e.I(f's_mov_b32 s{d}, s{lo}')
    e.I(f's_and_b32 s{d+1}, s{lo+1}, 0xffff')
    e.I(f's_mov_b32 s{d+2}, {nbytes}')
    e.I(f's_mov_b32 s{d+3}, 0x20000')

def run(e, x):
    if callable(x): x(e)
    else: e.I(x)

def interleave(e, mf, fl):
    n = len(mf); m = len(fl); j = 0
    for i, x in enumerate(mf):
        run(e, x)
        tgt = (m * (i + 1) + n - 1) // n
        while j < tgt:
            run(e, fl[j]); j += 1
    while j < m:
        run(e, fl[j]); j += 1

class Ring:
    def __init__(self):
        self.free = list(range(NSLOT)); self.items = []; self.next = 0; self.slot = {}; self.seq = {}
    def alloc(self, item):
        if item[0] == 'x':
            if item[1] == 0:
                c = [s_ for s_ in range(0, NSLOT, 2) if s_ in self.free and s_ + 1 in self.free and (s_ >= 4 or item[2] < 4)]
                if not c: return None
                sl = c[0]
            else:
                sl = self.slot[('x', 0, item[2])] + 1
        else:
            cand = [s_ for s_ in self.free if s_ >= 3 and (not self.x_pending() or (s_ ^ 1) not in self.free)] or [s_ for s_ in self.free if s_ >= 3]
            if not cand: return None
            sl = max(cand)
        self.free.remove(sl); self.slot[item] = sl
        return sl
    def x_pending(self):
        return any(it[0] == 'x' for it in self.items[self.next:])

def k1_prologue(e):
    V = e.I
    V('s_cmp_ge_u32 s2, 256')
    V('s_cbranch_scc1 K1_END')
    V(f's_load_dwordx16 s[{KA}:{KA+15}], s[0:1], 0')
    V(f's_load_dwordx4 s[{KA+16}:{KA+19}], s[0:1], 64')
    V('s_and_b32 s3, s2, 7'); V('s_lshr_b32 s4, s2, 3')
    V('s_and_b32 s5, s3, 1'); V('s_lshl_b32 s5, s5, 3'); V('s_and_b32 s6, s4, 7')
    V(f's_add_u32 s{S_MT}, s5, s6'); V(f's_lshr_b32 s{S_P}, s3, 1'); V(f's_lshr_b32 s{S_R}, s4, 3')
    L, A, B, C = 160, 161, 162, 163
    V(f'v_and_b32 v{L}, 63, v0')
    V(f'v_lshrrev_b32 v{A}, 6, v0')
    V('s_nop 0')
    V(f'v_readfirstlane_b32 s{S_WAVE}, v{A}')
    V(f's_mov_b32 s{S_MASK}, 0xffff0000')
    V(f's_mov_b32 s{S_INV512}, 0x{f2u(1.0/512):08x}')
    V(f's_lshr_b32 s{S_RH}, s{S_WAVE}, 1')
    V(f's_and_b32 s{S_C}, s{S_WAVE}, 1')
    V(f's_lshl_b32 s{S_W2K}, s{S_WAVE}, 11')
    V(f's_lshl_b32 s{S_XB}, s{S_MT}, 17')
    V(f's_lshl_b32 s{S_RH2K}, s{S_RH}, 11')
    V(f's_mov_b32 s{S_ONES}, 0x3f803f80')
    V(f'v_lshlrev_b32 v{V_L16}, 4, v{L}')
    G4, L7, R0 = 164, 165, 166
    V(f'v_lshrrev_b32 v{R0}, 3, v{L}')
    V(f'v_lshrrev_b32 v{G4}, 4, v{L}')
    V(f'v_and_b32 v{L7}, 7, v{L}')
    V(f's_lshl_b32 s{S_T}, s{S_WAVE}, 4')
    V(f'v_add_u32 v{R0}, s{S_T}, v{R0}')
    for j in range(2):
        V(f'v_add_u32 v{A}, {4*j}, v{G4}'); V(f'v_and_b32 v{A}, 7, v{A}'); V(f'v_xor_b32 v{A}, v{L7}, v{A}'); V(f'v_lshlrev_b32 v{A}, 4, v{A}')
        V(f'v_lshl_add_u32 v{V_DX+j}, v{R0}, 10, v{A}')
        if j: V(f'v_add_u32 v{V_DX+j}, {8*1024 - 1024}, v{V_DX+j}')
    V(f'v_lshrrev_b32 v{A}, 2, v{L}'); V(f'v_xor_b32 v{A}, v{A}, v{G4}'); V(f'v_and_b32 v{A}, 1, v{A}'); V(f'v_lshlrev_b32 v{A}, 6, v{A}')
    V(f'v_and_b32 v{B}, 3, v{L}'); V(f'v_lshl_add_u32 v{A}, v{B}, 4, v{A}')
    for (vd, stride) in ((V_DW, 3584), (V_DQ, 3072)):
        V(f's_mov_b32 s{S_T}, {stride}')
        V(f'v_mul_lo_u32 v{B}, v{R0}, s{S_T}')
        V(f'v_add_u32 v{vd}, v{B}, v{A}')
        V(f'v_add_u32 v{vd+1}, {8*stride - 1024}, v{vd}')
    ROW, HF = 167, 168
    V(f'v_and_b32 v{ROW}, 31, v{L}'); V(f'v_lshrrev_b32 v{HF}, 5, v{L}')
    V(f'v_lshrrev_b32 v{A}, 1, v{ROW}'); V(f'v_and_b32 v{A}, 7, v{A}')
    V(f's_lshl_b32 s{S_T}, s{S_RH}, 13')
    V(f'v_lshlrev_b32 v{B}, 7, v{ROW}'); V(f'v_add_u32 v{B}, s{S_T}, v{B}')
    for ks in range(4):
        V(f'v_add_u32 v{C}, {2*ks}, v{HF}'); V(f'v_xor_b32 v{C}, v{C}, v{A}')
        V(f'v_lshl_add_u32 v{V_XR+ks}, v{C}, 4, v{B}')
    V(f's_cmp_eq_u32 s{S_C}, 1'); V('s_cselect_b64 vcc, -1, 0')
    V(f'v_cndmask_b32 v{V_XS}, v{V_XR}, v{V_XR+1}, vcc')
    V(f'v_cndmask_b32 v{V_XS+1}, v{V_XR+2}, v{V_XR+3}, vcc')
    for pg in (1, 2):
        for i in range(4): V(f'v_add_u32 v{V_XR+4*pg+i}, {pg*0x10000}, v{V_XR+i}')
        for i in range(2): V(f'v_add_u32 v{V_XS+2*pg+i}, {pg*0x10000}, v{V_XS+i}')
    V(f'v_bfe_u32 v{A}, v{L}, 2, 2')
    V(f'v_lshl_add_u32 v{B}, v{HF}, 3, v{A}'); V(f'v_lshlrev_b32 v{B}, 7, v{B}')
    V(f'v_lshrrev_b32 v{C}, 1, v{A}'); V(f'v_xor_b32 v{C}, s{S_C}, v{C}'); V(f'v_lshl_add_u32 v{B}, v{C}, 6, v{B}')
    V(f'v_and_b32 v{C}, 1, v{G4}'); V(f'v_lshl_add_u32 v{B}, v{C}, 5, v{B}')
    V(f'v_and_b32 v{C}, 3, v{L}'); V(f'v_lshl_add_u32 v{V_WR}, v{C}, 3, v{B}')
    V(f'v_add_u32 v{V_WR+1}, 0x10000, v{V_WR}'); V(f'v_add_u32 v{V_WR+2}, 0x20000, v{V_WR}')
    V(f'v_and_b32 v{A}, 15, v{L}'); V(f'v_lshlrev_b32 v{A}, 4, v{A}'); V(f'v_lshl_add_u32 v{A}, v{HF}, 8, v{A}')
    V(f'v_and_b32 v{C}, 1, v{G4}'); V(f'v_lshl_add_u32 v{V_VST}, v{C}, 16, v{A}')
    V(f's_lshl_b32 s{S_T}, s{S_RH}, 6')
    V(f'v_add_u32 v{A}, s{S_T}, v{ROW}')
    V(f'v_lshlrev_b32 v{B}, 5, v{A}'); V(f'v_add_u32 v{V_XCR}, {XCH_STAT}, v{B}')
    V(f'v_lshlrev_b32 v{B}, 2, v{A}'); V(f'v_add_u32 v{V_RSW}, {XCH_RS}, v{B}')
    V(f's_lshl_b32 s{S_T}, s{S_RH}, 8')
    V(f'v_lshlrev_b32 v{B}, 4, v{HF}'); V(f'v_add_u32 v{B}, s{S_T}, v{B}'); V(f'v_add_u32 v{V_RSR}, {XCH_RS}, v{B}')
    V(f's_lshl_b32 s{S_T}, s{S_C}, 8')
    V(f'v_lshlrev_b32 v{B}, 3, v{ROW}'); V(f'v_add_u32 v{V_CSR}, s{S_T}, v{B}')
    V(f's_lshl_b32 s{S_T}, s{S_RH}, 2'); V(f'v_add_u32 v{V_XCC}, s{S_T}, v{V_CSR}')
    V(f'v_lshrrev_b32 v{A}, 2, v{L}'); V(f'v_xor_b32 v{A}, v{A}, v{G4}'); V(f'v_and_b32 v{A}, 1, v{A}')
    V(f'v_and_b32 v{B}, 3, v{L}'); V(f'v_or_b32 v{A}, v{A}, v{B}'); V(f'v_cmp_eq_u32 vcc, 0, v{A}')
    V(f'v_mov_b32 v{B}, 0x3f803f80'); V(f'v_cndmask_b32 v{V_SEL}, 0, v{B}, vcc')
    for i in range(1, 4): V(f'v_mov_b32 v{V_SEL+i}, v{V_SEL}')
    V(f'v_cmp_eq_u32 vcc, 0, v{HF}'); V(f'v_mov_b32 v{B}, -1.0'); V(f'v_cndmask_b32 v{V_NEGHF}, 0, v{B}, vcc')
    V(f'v_and_b32 v{A}, 15, v{L}'); V(f'v_lshlrev_b32 v{A}, 4, v{A}'); V(f'v_lshl_add_u32 v{A}, v{G4}, 10, v{A}')
    V(f's_lshl_b32 s{S_T}, s{S_WAVE}, 8'); V(f'v_add_u32 v{V_W2D}, s{S_T}, v{A}')
    V(f'v_bfe_u32 v{A}, v{L}, 2, 2'); V(f'v_lshl_add_u32 v{A}, v{HF}, 2, v{A}'); V(f'v_lshlrev_b32 v{A}, 8, v{A}')
    V(f'v_and_b32 v{C}, 1, v{G4}'); V(f'v_lshl_add_u32 v{A}, v{C}, 5, v{A}')
    V(f'v_and_b32 v{C}, 3, v{L}'); V(f'v_lshl_add_u32 v{A}, v{C}, 3, v{A}')
    V(f's_lshl_b32 s{S_T}, s{S_WAVE}, 12'); V(f's_add_u32 s{S_T}, s{S_T}, {W2P}'); V(f'v_add_u32 v{V_W2R}, s{S_T}, v{A}')
    e.smem_wait()
    srd(e, SRD_X, KA + 0, 2048 * 1024)
    srd(e, SRD_QKV, KA + 2, 512 * 3072)
    srd(e, SRD_G, KA + 8, 512 * 3584)
    srd(e, SRD_U, KA + 10, 512 * 3584)
    srd(e, SRD_WS, KA + 18, WS_BYTES)
    srd(e, SRD_WD, KA + 12, 1792 * 1024)
    srd(e, SRD_WO, KA + 4, 512 * 1024)
    V(f's_lshl_b32 s{S_T2}, s{S_MT}, 2'); V(f's_lshl_b32 s{S_T}, s{S_RH}, 1'); V(f's_add_u32 s{S_T2}, s{S_T2}, s{S_T}')
    V('s_lshl_b32 s94, s2, 11'); V(f's_lshl_b32 s95, s{S_WAVE}, 8'); V('s_add_u32 s94, s94, s95'); V(f's_add_u32 s94, s94, {PROFB}')
    e.stamp(0, SRD_WS, 94, (58, 59), vz=57)
    V('s_cmp_ge_u32 s2, 32')
    V('s_cbranch_scc1 K1_NOFLAG')
    st = e.cond_begin()
    V(f's_lshl_b32 s{S_T}, s2, 7'); V(f's_add_u32 s{S_T}, s{S_T}, {FLAGS}')
    V('v_mov_b32 v160, 0')
    V(f'buffer_store_dword v160, v160, s[{SRD_WS}:{SRD_WS+3}], s{S_T} offen sc1')
    e.pad8(); e.cond_end(st); e.label('K1_NOFLAG')
    V(f's_cmp_eq_u32 s{S_R}, 3')
    V('s_cbranch_scc1 K1_TYPEB')

def out_gu(e, sdst, s_pu):
    e.I(f's_lshl_b32 s{S_T}, s{s_pu}, 1'); e.I(f's_add_u32 s{S_T}, s{S_T}, s{S_C}'); e.I(f's_lshl_b32 s{S_T}, s{S_T}, 1')
    e.I(f's_mul_i32 s{S_T3}, s{S_T2}, 144'); e.I(f's_add_u32 s{S_T}, s{S_T}, s{S_T3}')
    e.I(f's_lshl_b32 s{S_T}, s{S_T}, 10'); e.I(f's_add_u32 s{sdst}, s{S_T}, {AF}')
    e.I(f's_add_u32 s{sdst+1}, s{sdst}, {144*1024}')

def out_head(e, sdst, s_unit, n):
    e.I(f's_lshl_b32 s{S_T}, s{s_unit}, 1'); e.I(f's_add_u32 s{S_T}, s{S_T}, s{S_C}'); e.I(f's_lshl_b32 s{S_T}, s{S_T}, 17')
    e.I(f's_lshl_b32 s{S_T3}, s{S_T2}, 10'); e.I(f's_add_u32 s{sdst}, s{S_T}, s{S_T3}')
    if n > 1: e.I(f's_add_u32 s{sdst+1}, s{sdst}, 65536')

def k1_body(e, typ):
    pfx = f'K1{typ}'
    U = 84
    O_GU0, O_GU1, O_V1, O_V2, O_QK = S_OUT, S_OUT + 2, S_OUT + 2, S_OUT + 3, S_OUT + 4
    if typ == 'A':
        kinds = ['G', 'U', 'G', 'U', 'Q']
        e.I(f's_mul_i32 s{U}, s{S_P}, 3'); e.I(f's_add_u32 s{U}, s{U}, s{S_R}')
        e.I(f's_lshl_b32 s{U+1}, s{U}, 1'); e.I(f's_add_u32 s{U+2}, s{U+1}, 1')
        e.I(f's_lshl_b32 s{S_UB+0}, s{U+1}, 7'); e.I(f's_mov_b32 s{S_UB+1}, s{S_UB+0}')
        e.I(f's_lshl_b32 s{S_UB+2}, s{U+2}, 7'); e.I(f's_mov_b32 s{S_UB+3}, s{S_UB+2}')
        e.I(f's_lshl_b32 s{S_UB+4}, s{U}, 7')
        out_gu(e, O_GU0, U + 1); out_gu(e, O_GU1, U + 2)
        out_head(e, O_QK, U, 2)
        e.I(f's_cmp_lt_u32 s{U}, 8'); e.I(f's_cselect_b32 s{S_QSC}, 0x{f2u(QSCALE):08x}, 1.0')
    else:
        kinds = ['G', 'U', 'Q', 'Q', 'Q']
        e.I(f's_add_u32 s{U}, s{S_P}, 24'); e.I(f's_add_u32 s{U+1}, s{S_P}, 12')
        e.I(f's_lshl_b32 s{U+2}, s{S_P}, 1'); e.I(f's_add_u32 s{U+2}, s{U+2}, 16'); e.I(f's_add_u32 s{U+3}, s{U+2}, 1')
        e.I(f's_lshl_b32 s{S_UB+0}, s{U}, 7'); e.I(f's_mov_b32 s{S_UB+1}, s{S_UB+0}')
        e.I(f's_lshl_b32 s{S_UB+2}, s{U+2}, 7'); e.I(f's_lshl_b32 s{S_UB+3}, s{U+3}, 7'); e.I(f's_lshl_b32 s{S_UB+4}, s{U+1}, 7')
        out_gu(e, O_GU0, U)
        out_head(e, O_V1, U + 2, 1); out_head(e, O_V2, U + 3, 1); out_head(e, O_QK, U + 1, 2)
        e.I(f's_mov_b32 s{S_QSC}, 1.0')
    usrd = {'G': SRD_G, 'U': SRD_U, 'Q': SRD_QKV}
    ustride = {'G': 3584, 'U': 3584, 'Q': 3072}
    uvd = {'G': V_DW, 'U': V_DW, 'Q': V_DQ}
    isV = [False, False, typ == 'B', typ == 'B', False]

    ring = Ring()
    started = [False]
    for s_ in range(8):
        ring.items += [('w', 0, s_), ('x', 0, s_), ('x', 1, s_)]
    for u in (1, 2, 3, 4):
        for s_ in range(8): ring.items.append(('w', u, s_))
    uslot = [0, 1, 2, 0, 1]

    def dma_item(item):
        sl = ring.slot[item]
        if item[0] == 'x':
            _, hx, s_ = item
            so = f's_add_u32 s{S_T}, s{S_XB}, {hx*65536 + s_*128}'; vd = V_DX; sr = SRD_X
        else:
            _, u, s_ = item; k = kinds[u]
            so = f's_add_u32 s{S_T}, s{S_UB+u}, {s_*64*ustride[k]}'; vd = uvd[k]; sr = usrd[k]
        def f1(e):
            if 'nodma' in ABL and started[0]: return
            e.I(so); e.I(f's_add_u32 m0, s{S_W2K}, {sl*SLOT}')
            e.I(f'buffer_load_dwordx4 v{vd}, s[{sr}:{sr+3}], s{S_T} offen lds')
        def f2(e):
            if 'nodma' in ABL and started[0]:
                ring.seq[item] = 0; return
            ring.seq[item] = e.I(f'buffer_load_dwordx4 v{vd+1}, s[{sr}:{sr+3}], s{S_T} offen offset:1024 lds')
        def f(e):
            f1(e); f2(e)
        return f
    def refill():
        ops = []
        while ring.next < len(ring.items):
            it = ring.items[ring.next]
            if ring.alloc(it) is None: break
            ring.next += 1
            ops.append(dma_item(it))
        return ops
    def release(items):
        for it in items: ring.free.append(ring.slot[it])
    def wread(tau):
        u, t_ = tau >> 5, tau & 31
        dst = WBUF[tau % NWB]
        sl = ring.slot[('w', u, t_ >> 2)]
        base = sl * SLOT + (t_ & 3) * 2048
        out = []
        for rd in range(2):
            ad = base + rd * 512
            out.append(f'ds_read_b64_tr_b16 v[{dst+2*rd}:{dst+2*rd+1}], v{V_WR + (ad >> 16)} offset:{ad & 0xffff}')
        return out
    def csread(u, s_):
        sl = ring.slot[('w', u, s_)]
        base = sl * SLOT
        out = [f'v_add_u32 v{V_CA}, s{S_RH2K}, v{V_WR + (base >> 16)}']
        for h in range(2):
            for rd in range(2):
                ad = (base & 0xffff) + h * 4096 + rd * 512
                out.append(f'ds_read_b64_tr_b16 v[{V_CB+4*h+2*rd}:{V_CB+4*h+2*rd+1}], v{V_CA} offset:{ad}')
        return out
    def csmm(s_, h):
        c = '0' if (s_ == 0 and h == 0) else f'v[{V_CS}:{V_CS+3}]'
        return [f'v_mfma_f32_16x16x32_bf16 v[{V_CS}:{V_CS+3}], v[{V_SEL}:{V_SEL+3}], v[{V_CB+4*h}:{V_CB+4*h+3}], {c}']
    def xread(t_):
        sl0 = ring.slot[('x', 0, t_ >> 2)]; ad = sl0 * SLOT
        return [f'ds_read_b128 a[{xa(rbk,t_)}:{xa(rbk,t_)+3}], v{V_XR + 4*(ad >> 16) + (t_ & 3)} offset:{(ad & 0xffff) + rbk*4096}' for rbk in range(2)]
    def sread(t_):
        sl0 = ring.slot[('x', 0, t_ >> 2)]; ad = sl0 * SLOT
        b = V_SF + 8 * ((t_ >> 1) & 1)
        return [f'ds_read_b128 v[{b+4*rbk}:{b+4*rbk+3}], v{V_XS + 2*(ad >> 16) + ((t_ & 3) >> 1)} offset:{(ad & 0xffff) + rbk*4096}' for rbk in range(2)]
    def stat_ops(t_):
        b = V_SF + 8 * ((t_ >> 1) & 1)
        out = []
        for d in range(4):
            for rbk in range(2):
                st = V_ST + 4 * rbk; r = b + 4 * rbk + d
                out += [f'v_dot2c_f32_bf16 v{st + (d & 1)}, s{S_ONES}, v{r}', f'v_dot2c_f32_bf16 v{st + 2 + (d & 1)}, v{r}, v{r}']
        return out
    def mm(tau):
        u, t_ = tau >> 5, tau & 31
        wf = WBUF[tau % NWB]; out = []
        for rbk in range(2):
            d = acc(uslot[u], rbk)
            c = '0' if t_ == 0 else f'v[{d}:{d+15}]'
            X = f'a[{xa(rbk,t_)}:{xa(rbk,t_)+3}]'; W = f'v[{wf}:{wf+3}]'
            A, B = (X, W) if isV[u] else (W, X)
            out.append(f'v_mfma_f32_32x32x16_bf16 v[{d}:{d+15}], {A}, {B}, {c}')
        return out
    def rsync(need, drain=False):
        def f(e):
            if 'nosync' in ABL: return
            if drain: e.wait(lgkm=0)
            e.wait_vm_seq(max(ring.seq[i] for i in need))
            e.barrier()
        return f
    BAR = lambda e: (e.wait(lgkm=0), e.barrier())

    w2mark = [0]
    def w2prep_dma(e):
        w2mark[0] = e.vm
        e.I('s_cmp_ge_u32 s2, 144')
        e.I(f's_cbranch_scc1 {pfx}_w2a')
        st = e.cond_begin()
        e.I(f's_lshl_b32 s{S_T}, s2, 14')
        e.I(f's_lshl_b32 s{S_T3}, s{S_WAVE}, 12')
        e.I(f's_add_u32 m0, s{S_T3}, {W2P}')
        e.I('s_cmp_ge_u32 s2, 112')
        e.I(f's_cbranch_scc1 {pfx}_w2o')
        for i in range(4):
            e.I(f'buffer_load_dwordx4 v{V_W2D}, s[{SRD_WD}:{SRD_WD+3}], s{S_T} offen offset:{i*1024} lds')
            e.I(f's_add_u32 s{S_T}, s{S_T}, {4096 - 1024}')
        e.I(f's_branch {pfx}_w2a')
        e.pad8(); e.label(f'{pfx}_w2o')
        e.I(f's_sub_u32 s{S_T}, s{S_T}, {112*16384}')
        for i in range(4):
            e.I(f'buffer_load_dwordx4 v{V_W2D}, s[{SRD_WO}:{SRD_WO+3}], s{S_T} offen offset:{i*1024} lds')
            e.I(f's_add_u32 s{S_T}, s{S_T}, {4096 - 1024}')
        e.pad8(); e.cond_end(st); e.label(f'{pfx}_w2a')
    def w2prep_proc(e):
        e.I('s_cmp_ge_u32 s2, 144')
        e.I(f's_cbranch_scc1 {pfx}_w2b')
        st = e.cond_begin()
        e.I(f's_mul_i32 s{S_T}, s{S_WAVE}, {4*144}'); e.I(f's_add_u32 s{S_T}, s{S_T}, s2')
        e.I(f's_lshl_b32 s{S_T}, s{S_T}, 10'); e.I(f's_add_u32 s{S_T}, s{S_T}, {W2F}')
        e.I(f's_waitcnt vmcnt({min(63, e.vm - w2mark[0])})')
        B = V_SF
        for q in range(4):
            for rd in range(2):
                e.I(f'ds_read_b64_tr_b16 v[{B+4*q+2*rd}:{B+4*q+2*rd+1}], v{V_W2R} offset:{q*64 + rd*2048}')
        e.wait(lgkm=0)
        for q in range(4):
            e.I(f'buffer_store_dwordx4 v[{B+4*q}:{B+4*q+3}], v{V_L16}, s[{SRD_WS}:{SRD_WS+3}], s{S_T} offen')
            if q < 3: e.I(f's_add_u32 s{S_T}, s{S_T}, {144*1024}')
        e.nop(2)
        e.pad8(); e.cond_end(st); e.label(f'{pfx}_w2b')

    def stats_write():
        out = [f's_lshl_b32 s{S_T3}, s{S_C}, 4',
               f'v_lshrrev_b32 v{V_T+1}, 5, v{V_L16}', f'v_and_b32 v{V_T+1}, 0x10, v{V_T+1}', f'v_lshrrev_b32 v{V_T+1}, 1, v{V_T+1}',
               f'v_add3_u32 v{V_T+1}, v{V_T+1}, s{S_T3}, v{V_XCR}']
        for rbk in range(2):
            st = V_ST + 4 * rbk
            out += [f'v_add_f32 v{st}, v{st}, v{st+1}', f'v_add_f32 v{st+1}, v{st+2}, v{st+3}',
                    f'ds_write_b64 v{V_T+1}, v[{st}:{st+1}] offset:{rbk*1024}']
        return out
    def cs_write(region):
        return [f'ds_write_b32 v{V_XCC}, v{V_CS} offset:{XCH_CS + region*1024}']
    def stats_fin():
        rd = []; chains = []
        for rbk in range(2):
            a = V_SF + 8 * rbk; b = a + 4
            rd += [f'ds_read_b128 v[{a}:{a+3}], v{V_XCR} offset:{rbk*1024}', f'ds_read_b128 v[{b}:{b+3}], v{V_XCR} offset:{rbk*1024+16}']
            xg = V_XAUG + 4 * rbk
            ch = [f'v_add_f32 v{a}, v{a}, v{a+2}', f'v_add_f32 v{a+1}, v{a+1}, v{a+3}',
                  f'v_add_f32 v{b}, v{b}, v{b+2}', f'v_add_f32 v{b+1}, v{b+1}, v{b+3}',
                  f'v_add_f32 v{a}, v{a}, v{b}', f'v_add_f32 v{a+1}, v{a+1}, v{b+1}',
                  f'v_mul_f32 v{a}, s{S_INV512}, v{a}', f'v_mul_f32 v{a+1}, s{S_INV512}, v{a+1}',
                  f'v_fma_f32 v{a+1}, -v{a}, v{a}, v{a+1}', f'v_max_f32 v{a+1}, 0, v{a+1}',
                  f'v_cvt_pk_bf16_f32 v{a+2}, v{a}, v{a+1}',
                  f'v_and_b32 v{a+1}, s{S_MASK}, v{a+2}', f'v_lshlrev_b32 v{a}, 16, v{a+2}',
                  f'v_add_f32 v{a+1}, 0x3727c5ac, v{a+1}',
                  f'v_mul_f32 v{a}, v{a}, v{V_NEGHF}',
                  f'v_cvt_pk_bf16_f32 v{a+1}, v{a+1}, v{a+1}', f'v_cvt_pk_bf16_f32 v{xg}, v{a}, v{a}',
                  f'v_and_b32 v{a+1}, s{S_MASK}, v{a+1}',
                  f'v_sqrt_f32 v{a+1}, v{a+1}',
                  f'v_mov_b32 v{xg+1}, 0', f'v_mov_b32 v{xg+2}, 0',
                  f'v_cvt_pk_bf16_f32 v{a+1}, v{a+1}, v{a+1}', f'v_mov_b32 v{xg+3}, 0',
                  f'v_and_b32 v{V_IRS+rbk}, s{S_MASK}, v{a+1}',
                  f'v_rcp_f32 v{V_RST+rbk}, v{V_IRS+rbk}',
                  f'v_mov_b32 v{V_WAUG+1+rbk}, 0', f'v_mov_b32 v{V_WAUG+3}, 0',
                  f'v_mul_f32 v{V_NRL+rbk}, 0x{f2u(-LOG2E):08x}, v{V_RST+rbk}',
                  f'v_mul_f32 v{V_RSQ+rbk}, s{S_QSC}, v{V_RST+rbk}']
            if typ == 'B': ch += [f'ds_write_b32 v{V_RSW}, v{V_RST+rbk} offset:{rbk*128}']
            chains.append(ch)
        mix = [x for pair in zip(*chains) for x in pair]
        return rd + ['MARK'] + mix
    def aug(region, u):
        t0 = V_T; w = V_WAUG
        out = [f'ds_read_b64 v[{t0}:{t0+1}], v{V_CSR} offset:{XCH_CS + region*1024}', 'MARK',
               f'v_add_f32 v{t0}, v{t0}, v{t0+1}',
               f'v_cvt_pk_bf16_f32 v{t0+1}, v{t0}, v{t0}', f'v_and_b32 v{t0+1}, s{S_MASK}, v{t0+1}',
               f'v_sub_f32 v{t0+1}, v{t0}, v{t0+1}', f'v_cvt_pk_bf16_f32 v{w}, v{t0}, v{t0+1}', 'MARK']
        for rbk in range(2):
            d = acc(uslot[u], rbk)
            X = f'v[{V_XAUG+4*rbk}:{V_XAUG+4*rbk+3}]'; W = f'v[{w}:{w+3}]'
            A, B = (X, W) if isV[u] else (W, X)
            out.append(f'v_mfma_f32_32x32x16_bf16 v[{d}:{d+15}], {A}, {B}, v[{d}:{d+15}]')
        return out + ['MARK']
    def epi_gu(sg, su, sout):
        out = []
        for rbk in range(2):
            G = acc(sg, rbk); Ur = acc(su, rbk)
            for hh in range(2):
                ix = range(8 * hh, 8 * hh + 8)
                out += [f'v_mul_f32 v{G+i}, v{G+i}, v{V_NRL+rbk}' for i in ix]
                out += [f'v_exp_f32 v{G+i}, v{G+i}' for i in ix]
                out += [f'v_fma_f32 v{G+i}, v{G+i}, v{V_IRS+rbk}, v{V_IRS+rbk}' for i in ix]
                out += [f'v_rcp_f32 v{G+i}, v{G+i}' for i in ix]
                out += [f'v_mul_f32 v{Ur+i}, v{Ur+i}, v{G+i}' for i in ix]
                b = 8 * hh
                out += [f'v_cvt_pk_bf16_f32 v{G+b+j}, v{Ur+b+2*j}, v{Ur+b+2*j+1}' for j in range(4)]
                out.append(f'buffer_store_dwordx4 v[{G+b}:{G+b+3}], v{V_L16}, s[{SRD_WS}:{SRD_WS+3}], s{sout+rbk} offen offset:{hh*1024}')
        return out
    def epi_qk(sl, sout):
        out = []
        for rbk in range(2):
            D = acc(sl, rbk)
            out += [f'v_mul_f32 v{D+i}, v{D+i}, v{V_RSQ+rbk}' for i in range(16)]
            for hd in range(2):
                b = D + 8 * hd
                out += [f'v_cvt_pk_bf16_f32 v{b+j}, v{b+2*j}, v{b+2*j+1}' for j in range(4)]
                out.append(f'buffer_store_dwordx4 v[{b}:{b+3}], v{V_L16}, s[{SRD_WS}:{SRD_WS+3}], s{sout+hd} offen offset:{rbk*1024}')
        return out
    def epi_v(sl, sout):
        out = []
        for rbk in range(2):
            D = acc(sl, rbk); T = V_SF
            out += [f'ds_read_b128 v[{T+4*j}:{T+4*j+3}], v{V_RSR} offset:{rbk*128 + j*32}' for j in range(4)] + ['MARK']
            out += [f'v_mul_f32 v{D+i}, v{D+i}, v{T+i}' for i in range(16)]
            for t2 in range(2):
                b = D + 8 * t2
                out += [f'v_cvt_pk_bf16_f32 v{b+j}, v{b+2*j}, v{b+2*j+1}' for j in range(4)]
                out.append(f'buffer_store_dwordx4 v[{b}:{b+3}], v{V_VST}, s[{SRD_WS}:{SRD_WS+3}], s{sout} offen offset:{rbk*1024 + t2*512}')
        return out

    init = refill()
    NPRE = 9
    for op in init[:NPRE]: run(e, op)
    started[0] = True
    for i in range(8): e.I(f'v_mov_b32 v{V_ST+i}, 0')
    groups = []
    for s_ in range(8): groups.append((4 * s_, [('w', 0, s_), ('x', 0, s_), ('x', 1, s_)]))
    for u in (1, 2, 3, 4):
        for h in range(4): groups.append((32 * u + 8 * h, [('w', u, 2 * h), ('w', u, 2 * h + 1)]))
    LK = int(os.environ.get('LK', '5'))
    e.wait_vm_seq(max(ring.seq[i] for i in groups[0][1]))
    e.barrier()
    e.stamp(1, SRD_WS, 94, (58, 59), vz=57)

    queues = []
    def addq(start, dl, ops):
        if 'noepi' in ABL: return
        queues.append(dict(start=start, dl=dl, ops=list(ops)))
    bar_at = {}
    pre_groups = [gi for gi in range(1, len(groups)) if groups[gi][0] - LK < 0]
    for gi in range(1, len(groups)):
        if groups[gi][0] - LK >= 0: bar_at[groups[gi][0] - LK] = gi
    bars = sorted(bar_at)
    glast = [groups[gi + 1][0] - 1 if gi + 1 < len(groups) else 159 for gi in range(len(groups))]
    released = set()
    def next_bar(tau): return next(b for b in bars if b >= tau)
    b0 = next_bar(33)
    addq(b0, b0 + 7, stats_fin() + aug(0, 0))
    b1 = next_bar(65)
    addq(b1, b1 + 3, aug(1, 1))
    addq(b1 + 4, 94, epi_gu(0, 1, O_GU0))
    b2 = next_bar(97)
    addq(b2, b2 + 3, aug(0, 2))
    if typ == 'B': addq(b2 + 4, 126, epi_v(2, O_V1))
    b3 = next_bar(129)
    addq(b3, b3 + 3, aug(1, 3))
    addq(b3 + 4, 158, epi_gu(2, 0, O_GU1) if typ == 'A' else epi_v(0, O_V2))
    addq(b0 + 9, b0 + 10, [w2prep_dma])
    addq(b2 - 2, b2 - 1, [w2prep_proc])

    pend_dma = list(init[NPRE:])
    def take(n):
        r = pend_dma[:n]; del pend_dma[:n]; return r
    for gi in pre_groups:
        while any(i not in ring.seq for i in groups[gi][1]):
            run(e, pend_dma.pop(0))
    if pre_groups:
        e.wait_vm_seq(max(ring.seq[i] for gi in pre_groups for i in groups[gi][1]))
        e.barrier()
    for tk in range(LK):
        for op in xread(tk) + wread(tk): run(e, op)
    for op in sread(0): run(e, op)
    for tau in range(160):
        u, t_ = tau >> 5, tau & 31
        TL0 = int(os.environ.get('TL0', '-1'))
        if TL0 >= 0 and TL0 <= tau < TL0 + 14:
            e.raw(f'  s_memtime s[{64 + 2*(tau - TL0)}:{65 + 2*(tau - TL0)}]', 8)
        pre = []
        if tau in (32, 64, 96, 128):
            pre += cs_write((u - 1) & 1)
            if tau == 32: pre += stats_write()
        for op in pre: run(e, op)
        if tau in bar_at:
            gi = bar_at[tau]
            while any(i not in ring.seq for i in groups[gi][1]):
                run(e, pend_dma.pop(0))
            rsync(groups[gi][1], drain=(tau in (b0, b1, b2, b3, next_bar(b0 + 8))))(e)
            for gj in range(len(groups)):
                if gj not in released and glast[gj] < tau:
                    released.add(gj); release(groups[gj][1])
            pend_dma += refill()
        fl = []
        if tau + LK < 160:
            if tau + LK < 32: fl += xread(tau + LK)
            if 'nowread' not in ABL: fl += wread(tau + LK)
        if (t_ & 3) == 0 and 'nocs' not in ABL: fl += csread(u, t_ >> 2)
        mf = mm(tau)
        post = []
        if (t_ & 3) in (2, 3) and 'nocs' not in ABL: post += csmm(t_ >> 2, (t_ & 3) - 2)
        if u == 0:
            if (t_ & 3) == 0 and t_ + 2 < 32: fl += sread(t_ + 2)
            if t_ % 2 == 1 and 'nostat' not in ABL: post += stat_ops(t_ - 1)
        for q in queues:
            if q['ops'] and tau >= q['start']:
                real = [o for o in q['ops'] if o != 'MARK']
                rem = max(1, q['dl'] - tau + 1)
                n = (len(real) + rem - 1) // rem
                while q['ops'] and n > 0:
                    o = q['ops'].pop(0)
                    if o == 'MARK': break
                    fl.append(o); n -= 1
        fl += take(1)
        interleave(e, mf, fl)
        for op in post: run(e, op)
        if u == 0 and (t_ & 3) == 2 and t_ + 2 < 32:
            for op in sread(t_ + 2): run(e, op)
        if tau == 31: e.stamp(2, SRD_WS, 94, (58, 59), vz=57)
        if tau == 95: e.stamp(3, SRD_WS, 94, (58, 59), vz=57)
    assert not any([o for o in q['ops'] if o != 'MARK'] for q in queues), [len(q['ops']) for q in queues]
    assert not pend_dma
    e.stamp(4, SRD_WS, 94, (58, 59), vz=57)
    for op in cs_write(0) + [BAR] + [o for o in aug(0, 4) + epi_qk(1, O_QK) if o != 'MARK']: run(e, op)
    e.stamp(5, SRD_WS, 94, (58, 59), vz=57)
    if int(os.environ.get('TL0', '-1')) >= 0:
        e.raw('  s_waitcnt lgkmcnt(0)')
        e.I('v_mov_b32 v57, 0')
        for i in range(14):
            e.I(f'v_mov_b32 v58, s{64+2*i}')
            e.I(f'buffer_store_dword v58, v57, s[{SRD_WS}:{SRD_WS+3}], s94 offen offset:{128 + i*4}')
    e.I('s_endpgm')

def gen_k1():
    e = Emit()
    e.prof = PROF
    k1_prologue(e)
    k1_body(e, 'A')
    e.pad8()
    e.label('K1_TYPEB')
    e.lgkm = e.lgkm_done = 0; e.vm = e.vm_done = 0; e.pend = {}; e.window = []; e.alt = []; e.alt_ages = []
    k1_body(e, 'B')
    e.label('K1_END')
    e.I('s_endpgm')
    return e

if __name__ == '__main__':
    e = gen_k1()
    print(e.off, e.stats, e.nnop)
```

```python
from emit import *
from k1 import QF, VF, AF, W2F, FLAGS, WS_BYTES, srd, run, interleave, f2u

KA = 64
A_SRD = 8
A_MASK = 36
def lane_mask(i):
    m = 0
    for l in range(64):
        hf = l >> 5; a_ = l & 31
        b = 8 * (i >> 2) + 4 * hf + (i & 3)
        if b <= a_: m |= 1 << l
    return m

VK = 8
VV = 48
VQ = 128
VS = 136
VP = 184
VO = 200
VC = 216
VPM = 232
VM = 240
V_L16 = 1; V_INV = 2; V_VLD = 3; V_KSEL = 4

def attn_setup(e, s_head, s_rt, S0):
    sK, sV, sT, sOne, sKb = S0, S0 + 1, S0 + 2, S0 + 3, S0 + 4
    e.I('v_and_b32 v5, 63, v0')
    e.I(f'v_lshlrev_b32 v{V_L16}, 4, v5')
    e.I('v_lshrrev_b32 v6, 5, v5')
    e.I(f'v_lshlrev_b32 v{V_INV}, 9, v6')
    e.I('v_and_b32 v7, 15, v5')
    e.I('v_lshlrev_b32 v7, 4, v7')
    e.I(f'v_lshl_add_u32 v{V_VLD}, v6, 8, v7')
    e.I(f's_lshl_b32 s{sT}, s{s_head}, 16')
    e.I(f's_lshl_b32 s{sKb}, s{s_rt}, 11')
    e.I(f's_add_u32 s{sQ(S0)}, s{sT}, s{sKb}')
    if QF: e.I(f's_add_u32 s{sQ(S0)}, s{sQ(S0)}, {QF}')
    e.I(f'buffer_load_dwordx4 v[{VQ}:{VQ+3}], v{V_L16}, s[{A_SRD}:{A_SRD+3}], s{sQ(S0)} offen')
    e.I(f'buffer_load_dwordx4 v[{VQ+4}:{VQ+7}], v{V_L16}, s[{A_SRD}:{A_SRD+3}], s{sQ(S0)} offen offset:1024')
    e.I(f's_add_u32 s{sK}, s{sT}, {QF + 32*65536}')
    e.I(f's_add_u32 s{sV}, s{sT}, {VF}')
    e.I(f's_sub_u32 s{sKb}, s{sKb}, 8192')
    for j in range(10):
        e.I(f's_cmp_ge_i32 s{sKb}, 0')
        e.I('s_cselect_b64 vcc, -1, 0')
        e.I(f's_cselect_b32 s{sT}, s{sKb}, 0')
        e.I(f's_add_u32 s{sT}, s{sT}, s{sK}')
        e.I(f'v_cndmask_b32 v{V_KSEL}, v{V_INV}, v{V_L16}, vcc')
        e.I(f'buffer_load_dwordx4 v[{VK+4*j}:{VK+4*j+3}], v{V_KSEL}, s[{A_SRD}:{A_SRD+3}], s{sT} offen')
        e.I(f's_add_u32 s{sKb}, s{sKb}, 1024')
    e.I(f's_sub_u32 s{sKb}, s{sKb}, 10240')
    for j in range(10):
        e.I(f's_cmp_ge_i32 s{sKb}, 0')
        e.I(f's_cselect_b32 s{sOne}, 0x3f803f80, 0')
        e.I(f's_add_u32 s{sT}, s{sKb}, s{sV}')
        e.I(f's_cmp_ge_i32 s{sKb}, 0')
        e.I(f's_cselect_b32 s{sT}, s{sT}, 0x7ff00000')
        for r in range(8): e.I(f'v_mov_b32 v{VV+8*j+r}, s{sOne}')
        e.I('s_mov_b32 exec_lo, 0xffff')
        e.I('s_mov_b32 exec_hi, 0xffff')
        for t in range(2):
            e.I(f'buffer_load_dwordx4 v[{VV+8*j+4*t}:{VV+8*j+4*t+3}], v{V_VLD}, s[{A_SRD}:{A_SRD+3}], s{sT} offen offset:{t*512}')
        e.I('s_mov_b64 exec, -1')
        e.I(f's_add_u32 s{sKb}, s{sKb}, 1024')
    for i in range(16):
        m = lane_mask(i)
        e.I(f's_mov_b32 s{A_MASK+2*i}, 0x{m & 0xffffffff:08x}')
        e.I(f's_mov_b32 s{A_MASK+2*i+1}, 0x{m >> 32:08x}')
    e.I(f'v_mov_b32 v{VM}, 0xffff')
    e.I(f'v_mov_b32 v{VM+1}, 0xffff0000')
    for jj in range(8):
        e.I(f'v_cndmask_b32 v{VPM+jj}, 0, v{VM}, s[{A_MASK+4*jj}:{A_MASK+4*jj+1}]')
        e.I(f'v_cndmask_b32 v{VM+2}, 0, v{VM+1}, s[{A_MASK+4*jj+2}:{A_MASK+4*jj+3}]')
        e.I(f'v_or_b32 v{VPM+jj}, v{VPM+jj}, v{VM+2}')

def sQ(S0): return S0 + 5

def attn_task(e, j0, q, s_out, stmod=''):
    K = lambda j: f'v[{VK+4*(j0+j)}:{VK+4*(j0+j)+3}]'
    Vf = lambda j, t: f'v[{VV+8*(j0+j)+4*t}:{VV+8*(j0+j)+4*t+3}]'
    Q = f'v[{VQ+4*q}:{VQ+4*q+3}]'
    S = lambda b: VS + 16 * b
    Sr = lambda b: f'v[{S(b)}:{S(b)+15}]'
    m0, m1 = VM, VM + 1
    def smm(j, b, c): return f'v_mfma_f32_32x32x16_bf16 {Sr(b)}, {K(j)}, {Q}, {c}'
    def merge(ba, bb):
        return [f'v_cndmask_b32 v{S(bb)+i}, v{S(ba)+i}, v{S(bb)+i}, s[{A_MASK+2*i}:{A_MASK+2*i+1}]' for i in range(16)]
    def maxes(b, first=False):
        out = []
        for i in range(8):
            m = m0 if i % 2 == 0 else m1
            if first and i < 2: out.append(f'v_max_f32 v{m}, v{S(b)+2*i}, v{S(b)+2*i+1}')
            else: out.append(f'v_max3_f32 v{m}, v{S(b)+2*i}, v{S(b)+2*i+1}, v{m}')
        return out
    e.I(smm(0, 0, '0')); e.I(smm(8, 1, '0')); e.I(smm(1, 2, '0'))
    for op in merge(0, 1): e.I(op)
    e.I(smm(2, 0, '0'))
    for op in maxes(1, True): e.I(op)
    cur = 2
    bufs = {1: 2, 2: 0}
    for j in range(1, 8):
        if j + 2 <= 7:
            nb = [b for b in range(3) if b not in (bufs[j], bufs[j + 1])][0]
            bufs[j + 2] = nb
            e.I(smm(j + 2, nb, '0'))
        for op in maxes(bufs[j]): e.I(op)
    e.I(f'v_max_f32 v{m0}, v{m0}, v{m1}')
    e.I(f'v_mov_b32 v{m1}, v{m0}')
    e.I(f'v_permlane32_swap_b32 v{m0}, v{m1}')
    e.I(f'v_max_f32 v{m0}, v{m0}, v{m1}')
    for i in range(16): e.I(f'v_sub_f32 v{VC+i}, 0, v{m0}')
    C = f'v[{VC}:{VC+15}]'
    O = f'v[{VO}:{VO+15}]'
    def expcvt(b, p):
        out = []
        for g in range(2):
            out += [f'v_exp_f32 v{S(b)+8*g+i}, v{S(b)+8*g+i}' for i in range(8)]
            out += [f'v_cvt_pk_bf16_f32 v{p+4*g+i}, v{S(b)+8*g+2*i}, v{S(b)+8*g+2*i+1}' for i in range(4)]
        return out
    first = [True]
    def pv(j, p):
        out = []
        for t in range(2):
            c = '0' if first[0] else O
            first[0] = False
            out.append(f'v_mfma_f32_32x32x16_bf16 {O}, {Vf(j,t)}, v[{p+4*t}:{p+4*t+3}], {c}')
        return out
    e.I(smm(0, 0, C)); e.I(smm(8, 1, C)); e.I(smm(1, 2, C))
    for op in merge(0, 1): e.I(op)
    e.I(smm(2, 0, C))
    P0, P1 = VP, VP + 8
    for op in expcvt(1, P0): e.I(op)
    for i in range(8): e.I(f'v_bfi_b32 v{P1+i}, v{VPM+i}, 0, v{P0+i}')
    for i in range(8): e.I(f'v_and_b32 v{P0+i}, v{VPM+i}, v{P0+i}')
    for op in pv(0, P1) + pv(8, P0): e.I(op)
    bufs = {1: 2, 2: 0}
    for j in range(1, 8):
        if j + 2 <= 7:
            nb = [b for b in range(3) if b not in (bufs[j], bufs[j + 1])][0]
            bufs[j + 2] = nb
            e.I(smm(j + 2, nb, C))
        p = P0 if j % 2 else P1
        for op in expcvt(bufs[j], p): e.I(op)
        for op in pv(j, p): e.I(op)
    e.I(f'v_rcp_f32 v{m0}, v{VO+8}')
    for i in range(8): e.I(f'v_mul_f32 v{VO+i}, v{VO+i}, v{m0}')
    for i in range(4): e.I(f'v_cvt_pk_bf16_f32 v{VO+i}, v{VO+2*i}, v{VO+2*i+1}')
    e.I(f'buffer_store_dwordx4 v[{VO}:{VO+3}], v{V_L16}, s[{A_SRD}:{A_SRD+3}], s{s_out} offen{stmod}')

def gen_attn():
    e = Emit()
    e.I('s_cmp_ge_u32 s2, 256')
    e.I('s_cbranch_scc1 K2A_END')
    e.I(f's_load_dwordx2 s[{KA}:{KA+1}], s[0:1], 72')
    e.I('v_lshrrev_b32 v2, 6, v0')
    e.I('s_nop 0')
    e.I('v_readfirstlane_b32 s4, v2')
    e.I('s_and_b32 s5, s2, 7')
    e.I('s_lshl_b32 s5, s5, 2')
    e.I('s_lshr_b32 s6, s2, 3')
    e.I('s_and_b32 s7, s6, 3')
    e.I('s_add_u32 s5, s5, s7')
    e.I('s_lshr_b32 s6, s6, 2')
    e.I('s_lshl_b32 s6, s6, 2')
    e.I('s_add_u32 s6, s6, s4')
    e.smem_wait()
    srd(e, A_SRD, KA, WS_BYTES)
    attn_setup(e, 6, 5, 70)
    e.I('s_mul_i32 s80, s5, 288')
    e.I('s_add_u32 s80, s80, s6')
    e.I('s_add_u32 s80, s80, 112')
    e.I('s_lshl_b32 s80, s80, 10')
    e.I(f's_add_u32 s80, s80, {AF}')
    e.I(f's_add_u32 s81, s80, {144*1024}')
    attn_task(e, 0, 0, 80)
    attn_task(e, 1, 1, 81)
    e.label('K2A_END')
    e.I('s_endpgm')
    return e

G_SRD = 8; G_OUT = 12; G_X = 16
K2B_LDS = 4 * 64 * 272
def gen_gemm3():
    e = Emit()
    e.I('s_cmp_ge_u32 s2, 256')
    e.I('s_cbranch_scc1 K2B_END')
    e.I(f's_load_dwordx2 s[{KA}:{KA+1}], s[0:1], 72')
    e.I(f's_load_dwordx2 s[{KA+2}:{KA+3}], s[0:1], 56')
    e.I(f's_load_dwordx2 s[{KA+4}:{KA+5}], s[0:1], 0')
    e.I('v_lshrrev_b32 v2, 6, v0')
    e.I('v_and_b32 v5, 63, v0')
    e.I('v_readfirstlane_b32 s4, v2')
    e.I('s_and_b32 s5, s2, 7')
    e.I('s_lshl_b32 s5, s5, 2')
    e.I('s_lshr_b32 s6, s2, 3')
    e.I('s_and_b32 s7, s6, 3')
    e.I('s_add_u32 s5, s5, s7')
    e.I('s_lshr_b32 s6, s6, 2')
    e.I('v_lshlrev_b32 v1, 4, v5')
    e.I(f'v_add_u32 v2, {144*1024}, v1')
    e.smem_wait()
    srd(e, G_SRD, KA, WS_BYTES)
    srd(e, G_OUT, KA + 2, 2048 * 1024)
    srd(e, G_X, KA + 4, 2048 * 1024)
    e.I('s_mul_i32 s20, s5, 288'); e.I('s_lshl_b32 s20, s20, 10'); e.I(f's_add_u32 s20, s20, {AF}')
    e.I('s_mul_i32 s21, s6, 288'); e.I('s_lshl_b32 s21, s21, 10'); e.I(f's_add_u32 s21, s21, {W2F}')
    e.I('s_mul_i32 s22, s4, 28'); e.I('s_lshl_b32 s22, s22, 10')
    e.I('s_lshl_b32 s23, s4, 3'); e.I('s_add_u32 s23, s23, 112'); e.I('s_lshl_b32 s23, s23, 10')
    e.I('s_add_u32 s24, s20, s22'); e.I('s_add_u32 s25, s21, s22')
    e.I('s_add_u32 s26, s20, s23'); e.I('s_add_u32 s27, s21, s23')
    NB = 8
    VB = 64
    ACC = 0 + 192
    def loads(i):
        b = VB + 16 * (i % NB)
        if i < 28: sa, sw, k = 24, 25, i
        else: sa, sw, k = 26, 27, i - 28
        out = []
        if k % 4 == 0 and k > 0:
            out += [f's_add_u32 s{sa}, s{sa}, 4096', f's_add_u32 s{sw}, s{sw}, 4096']
        im = (k % 4) * 1024
        out += [f'buffer_load_dwordx4 v[{b}:{b+3}], v1, s[{G_SRD}:{G_SRD+3}], s{sw} offen offset:{im}',
                f'buffer_load_dwordx4 v[{b+8}:{b+11}], v1, s[{G_SRD}:{G_SRD+3}], s{sa} offen offset:{im}',
                f'buffer_load_dwordx4 v[{b+4}:{b+7}], v2, s[{G_SRD}:{G_SRD+3}], s{sw} offen offset:{im}',
                f'buffer_load_dwordx4 v[{b+12}:{b+15}], v2, s[{G_SRD}:{G_SRD+3}], s{sa} offen offset:{im}']
        return out
    for i in range(NB):
        for op in loads(i): e.I(op)
    for i in range(36):
        b = VB + 16 * (i % NB)
        for cbk in range(2):
            for rbk in range(2):
                d = ACC + 16 * (cbk * 2 + rbk)
                c = '0' if i == 0 else f'v[{d}:{d+15}]'
                e.I(f'v_mfma_f32_32x32x16_bf16 v[{d}:{d+15}], v[{b+4*cbk}:{b+4*cbk+3}], v[{b+8+4*rbk}:{b+8+4*rbk+3}], {c}')
        if i + NB < 36:
            for op in loads(i + NB): e.I(op)
    e.I('v_and_b32 v3, 31, v5')
    e.I('v_lshrrev_b32 v4, 5, v5')
    e.I('s_mov_b32 s30, 272')
    e.I('v_mul_lo_u32 v3, v3, s30')
    e.I('v_lshl_add_u32 v3, v4, 4, v3')
    e.I('s_mul_i32 s31, s4, 17408')
    e.I('v_add_u32 v3, s31, v3')
    e.I('v_lshrrev_b32 v6, 2, v0')
    e.I('v_and_b32 v7, 3, v0')
    e.I('s_lshl_b32 s32, s5, 16')
    e.I('s_lshl_b32 s33, s6, 7')
    e.I('s_add_u32 s32, s32, s33')
    e.I('v_lshlrev_b32 v8, 10, v6')
    e.I('v_lshl_add_u32 v8, v7, 5, v8')
    e.I(f'buffer_load_dwordx4 v[16:19], v8, s[{G_X}:{G_X+3}], s32 offen')
    e.I(f'buffer_load_dwordx4 v[20:23], v8, s[{G_X}:{G_X+3}], s32 offen offset:16')
    for cbk in range(2):
        for rbk in range(2):
            d = ACC + 16 * (cbk * 2 + rbk)
            for j in range(4):
                e.I(f'ds_write_b128 v3, v[{d+4*j}:{d+4*j+3}] offset:{rbk*32*272 + cbk*128 + j*32}')
    e.wait(lgkm=0)
    e.barrier()
    e.I('v_mul_lo_u32 v9, v6, s30')
    e.I('v_lshl_add_u32 v9, v7, 6, v9')
    for w in range(4):
        for q in range(4):
            e.I(f'ds_read_b128 v[{64+16*w+4*q}:{64+16*w+4*q+3}], v9 offset:{w*17408 + q*16}')
    for i in range(16):
        e.I(f'v_add_f32 v{64+i}, v{64+i}, v{80+i}')
        e.I(f'v_add_f32 v{96+i}, v{96+i}, v{112+i}')
    for i in range(16):
        e.I(f'v_add_f32 v{64+i}, v{64+i}, v{96+i}')
    for d in range(8):
        e.I(f'v_lshlrev_b32 v{32+2*d}, 16, v{16+d}')
        e.I(f'v_and_b32 v{33+2*d}, 0xffff0000, v{16+d}')
    for i in range(16):
        e.I(f'v_add_f32 v{64+i}, v{64+i}, v{32+i}')
    for d in range(8):
        e.I(f'v_cvt_pk_bf16_f32 v{16+d}, v{64+2*d}, v{65+2*d}')
    e.I(f'buffer_store_dwordx4 v[16:19], v8, s[{G_OUT}:{G_OUT+3}], s32 offen')
    e.I(f'buffer_store_dwordx4 v[20:23], v8, s[{G_OUT}:{G_OUT+3}], s32 offen offset:16')
    e.label('K2B_END')
    e.I('s_endpgm')
    return e


import os
PROF = os.environ.get('PROF', '') != ''
def gen_k2():
    e = Emit()
    e.prof = PROF
    e.I('s_cmp_ge_u32 s2, 256')
    e.I('s_cbranch_scc1 K2_END')
    e.I(f's_load_dwordx2 s[{KA}:{KA+1}], s[0:1], 72')
    e.I(f's_load_dwordx2 s[{KA+2}:{KA+3}], s[0:1], 56')
    e.I(f's_load_dwordx2 s[{KA+4}:{KA+5}], s[0:1], 0')
    e.I('v_lshrrev_b32 v2, 6, v0')
    e.I('v_and_b32 v5, 63, v0')
    e.I('v_readfirstlane_b32 s4, v2')
    e.I('s_and_b32 s5, s2, 7'); e.I('s_lshl_b32 s5, s5, 2'); e.I('s_lshr_b32 s6, s2, 3'); e.I('s_and_b32 s7, s6, 3')
    e.I('s_add_u32 s5, s5, s7')
    e.I('s_lshr_b32 s6, s6, 2')
    e.smem_wait()
    srd(e, 8, KA, WS_BYTES)
    e.I('s_lshl_b32 s90, s5, 7'); e.I(f's_add_u32 s90, s90, {FLAGS}')
    e.I(f's_add_u32 s88, s{KA}, s90'); e.I(f's_addc_u32 s89, s{KA+1}, 0')
    e.I('s_lshl_b32 s94, s2, 11'); e.I('s_lshl_b32 s95, s4, 8'); e.I('s_add_u32 s94, s94, s95'); e.I(f's_add_u32 s94, s94, {(19 << 20) + (1 << 19)}')
    e.I('s_cmp_lt_u32 s4, 4')
    e.I('s_cbranch_scc1 K2_ATTN')
    e.I('s_sub_u32 s4, s4, 4')
    e.I('v_and_b32 v0, 255, v0')
    e.stamp(0, 8, 94, (14, 15), vz=13, stmp=96)
    srd(e, G_OUT, KA + 2, 2048 * 1024)
    srd(e, G_X, KA + 4, 2048 * 1024)
    e.I('v_lshlrev_b32 v1, 4, v5')
    e.I(f'v_add_u32 v2, {144*1024}, v1')
    e.I('s_mul_i32 s20, s5, 288'); e.I('s_lshl_b32 s20, s20, 10'); e.I(f's_add_u32 s20, s20, {AF}')
    e.I('s_mul_i32 s21, s6, 288'); e.I('s_lshl_b32 s21, s21, 10'); e.I(f's_add_u32 s21, s21, {W2F}')
    e.I('s_mul_i32 s22, s4, 28'); e.I('s_lshl_b32 s22, s22, 10')
    e.I('s_lshl_b32 s23, s4, 3'); e.I('s_add_u32 s23, s23, 112'); e.I('s_lshl_b32 s23, s23, 10')
    e.I('s_add_u32 s24, s20, s22'); e.I('s_add_u32 s25, s21, s22')
    e.I('s_add_u32 s26, s20, s23'); e.I('s_add_u32 s27, s21, s23'); e.I('s_mov_b32 s28, s27')
    NB = 8
    VB = 64
    ACC = 192
    def wloads(i):
        b = VB + 16 * (i % NB)
        if i < 28: sw, k = 25, i
        else: sw, k = 27, i - 28
        out = []
        if k % 4 == 0 and k > 0: out += [f's_add_u32 s{sw}, s{sw}, 4096']
        im = (k % 4) * 1024
        out += [f'buffer_load_dwordx4 v[{b}:{b+3}], v1, s[8:11], s{sw} offen offset:{im}',
                f'buffer_load_dwordx4 v[{b+4}:{b+7}], v2, s[8:11], s{sw} offen offset:{im}']
        return out
    def aloads(i):
        b = VB + 16 * (i % NB)
        if i < 28: sa, k, md = 24, i, ''
        else: sa, k, md = 26, i - 28, ' sc1'
        out = []
        if k % 4 == 0 and k > 0: out += [f's_add_u32 s{sa}, s{sa}, 4096']
        im = (k % 4) * 1024
        out += [f'buffer_load_dwordx4 v[{b+8}:{b+11}], v1, s[8:11], s{sa} offen offset:{im}{md}',
                f'buffer_load_dwordx4 v[{b+12}:{b+15}], v2, s[8:11], s{sa} offen offset:{im}{md}']
        return out
    e.I('v_lshrrev_b32 v6, 2, v0'); e.I('v_and_b32 v7, 3, v0')
    e.I('s_lshl_b32 s32, s5, 16'); e.I('s_lshl_b32 s33, s6, 7'); e.I('s_add_u32 s32, s32, s33')
    e.I('v_lshlrev_b32 v8, 10, v6'); e.I('v_lshl_add_u32 v8, v7, 5, v8')
    e.I(f'buffer_load_dwordx4 v[16:19], v8, s[{G_X}:{G_X+3}], s32 offen')
    e.I(f'buffer_load_dwordx4 v[20:23], v8, s[{G_X}:{G_X+3}], s32 offen offset:16')
    for i in range(NB):
        for op in wloads(i)[:1] + aloads(i)[:0]: pass
    for i in range(NB):
        w_, a_ = wloads(i), aloads(i)
        for op in w_ + a_: e.I(op)
    pend_a = []
    for i in range(36):
        if i == 28 - 0:
            pass
        b = VB + 16 * (i % NB)
        if i == 28:
            e.stamp(1, 8, 94, (14, 15), vz=13, stmp=96)
            e.I('v_mov_b32 v9, 0')
            e.I('s_mov_b32 s34, 0')
            e.pad8()
            e.label('K2_POLL')
            e.raw('  global_load_dword v10, v9, s[88:89] sc1', 8)
            e.raw('  s_waitcnt vmcnt(0)')
            e.raw('  v_readfirstlane_b32 s35, v10')
            e.raw('  s_add_u32 s34, s34, 1')
            e.raw('  s_cmp_ge_u32 s35, 32')
            e.raw('  s_cbranch_scc1 K2_GO')
            e.raw('  s_sleep 2')
            e.raw('  s_cmp_lt_u32 s34, 0x400000', 8)
            e.raw('  s_cbranch_scc1 K2_POLL')
            e.pad8()
            e.label('K2_GO')
            e.vm_done = e.vm; e.pend = {r: p for r, p in e.pend.items() if p[0] != 'v'}
            e.stamp(2, 8, 94, (14, 15), vz=13, stmp=96)
            for j in pend_a:
                for op in aloads(j): e.I(op)
        for cbk in range(2):
            for rbk in range(2):
                d = ACC + 16 * (cbk * 2 + rbk)
                c = '0' if i == 0 else f'v[{d}:{d+15}]'
                e.I(f'v_mfma_f32_32x32x16_bf16 v[{d}:{d+15}], v[{b+4*cbk}:{b+4*cbk+3}], v[{b+8+4*rbk}:{b+8+4*rbk+3}], {c}')
        if i + NB < 36:
            j = i + NB
            for op in wloads(j): e.I(op)
            if j < 28:
                for op in aloads(j): e.I(op)
            else:
                pend_a.append(j)
    e.stamp(3, 8, 94, (14, 15), vz=13, stmp=96)
    e.I('v_and_b32 v3, 31, v5'); e.I('v_lshrrev_b32 v4, 5, v5'); e.I('s_mov_b32 s30, 272')
    e.I('v_mul_lo_u32 v3, v3, s30'); e.I('v_lshl_add_u32 v3, v4, 4, v3'); e.I('s_mul_i32 s31, s4, 17408'); e.I('v_add_u32 v3, s31, v3')
    for cbk in range(2):
        for rbk in range(2):
            d = ACC + 16 * (cbk * 2 + rbk)
            for j in range(4):
                e.I(f'ds_write_b128 v3, v[{d+4*j}:{d+4*j+3}] offset:{rbk*32*272 + cbk*128 + j*32}')
    e.I('v_mul_lo_u32 v9, v6, s30'); e.I('v_lshl_add_u32 v9, v7, 6, v9')
    for d in range(8):
        e.I(f'v_lshlrev_b32 v{32+2*d}, 16, v{16+d}')
        e.I(f'v_and_b32 v{33+2*d}, 0xffff0000, v{16+d}')
    e.wait(lgkm=0)
    e.barrier()
    for w in range(4):
        for q in range(4):
            e.I(f'ds_read_b128 v[{64+16*w+4*q}:{64+16*w+4*q+3}], v9 offset:{w*17408 + q*16}')
    for i in range(16):
        e.I(f'v_add_f32 v{64+i}, v{64+i}, v{80+i}')
        e.I(f'v_add_f32 v{96+i}, v{96+i}, v{112+i}')
    for i in range(16):
        e.I(f'v_add_f32 v{64+i}, v{64+i}, v{32+i}')
    for i in range(16):
        e.I(f'v_add_f32 v{64+i}, v{64+i}, v{96+i}')
    for d in range(8):
        e.I(f'v_cvt_pk_bf16_f32 v{16+d}, v{64+2*d}, v{65+2*d}')
    e.I(f'buffer_store_dwordx4 v[16:19], v8, s[{G_OUT}:{G_OUT+3}], s32 offen')
    e.I(f'buffer_store_dwordx4 v[20:23], v8, s[{G_OUT}:{G_OUT+3}], s32 offen offset:16')
    e.stamp(4, 8, 94, (14, 15), vz=13, stmp=96)
    e.I('s_endpgm')
    e.pad8()
    e.label('K2_ATTN')
    e.lgkm = e.lgkm_done = 0; e.vm = e.vm_done = 0; e.pend = {}; e.window = []; e.alt = []; e.alt_ages = []
    e.stamp(0, 8, 94, (14, 15), vz=13, stmp=96)
    if os.environ.get('APRIO', '1') != '0': e.I(f"s_setprio {os.environ.get('APRIO', '1')}")
    e.I('s_lshl_b32 s6, s6, 2'); e.I('s_add_u32 s6, s6, s4')
    attn_setup(e, 6, 5, 70)
    e.I('s_mul_i32 s80, s5, 288'); e.I('s_add_u32 s80, s80, s6'); e.I('s_add_u32 s80, s80, 112')
    e.I('s_lshl_b32 s80, s80, 10'); e.I(f's_add_u32 s80, s80, {AF}'); e.I(f's_add_u32 s81, s80, {144*1024}')
    attn_task(e, 0, 0, 80, ' sc1')
    e.stamp(1, 8, 94, (14, 15), vz=13, stmp=96)
    attn_task(e, 1, 1, 81, ' sc1')
    e.wait(vm=0)
    e.I('v_mov_b32 v9, 0'); e.I('v_mov_b32 v10, 1')
    e.I('s_mov_b32 exec_lo, 1'); e.I('s_mov_b32 exec_hi, 0')
    e.I('global_atomic_add v9, v10, s[88:89]')
    e.I('s_mov_b64 exec, -1')
    e.stamp(2, 8, 94, (14, 15), vz=13, stmp=96)
    e.label('K2_END')
    e.I('s_endpgm')
    return e

if __name__ == '__main__':
    for g in (gen_attn, gen_gemm3):
        e = g(); print(e.off, e.stats, e.nnop)
```

```python
import sys, os
sys.path.insert(0, 'gen')
from k1 import gen_k1, K1_LDS, K1_THREADS
from k2 import gen_attn, gen_gemm3, gen_k2, K2B_LDS
NAME = 'parallel_sum__sliding_block__glu_gated_glu__prompt'
HDR = open(f'cdna_kernels/{NAME}.s.ref').read().split('; Override launch geometry')[0]
def kd(name, vgpr, accum, sgpr=102):
    return f""".amdhsa_kernel {name}
  .amdhsa_next_free_vgpr {vgpr}
  .amdhsa_next_free_sgpr {sgpr}
  .amdhsa_accum_offset {accum}
  .amdhsa_group_segment_fixed_size 0
  .amdhsa_kernarg_size 80
  .amdhsa_user_sgpr_count 2
  .amdhsa_user_sgpr_kernarg_segment_ptr 1
  .amdhsa_system_sgpr_workgroup_id_x 1
.end_amdhsa_kernel
"""
def build(path=None):
    ks = [('k1_kernel', gen_k1(), K1_THREADS, K1_LDS, 512 if K1_THREADS == 256 else 256, 256 if K1_THREADS == 256 else 128),
          ('k2a_kernel', gen_attn(), 256, 0, 256, 256),
          ('k2b_kernel', gen_gemm3(), 256, K2B_LDS, 256, 256)]
    if os.environ.get('SPLIT', '') == '':
        ks = [ks[0], ('k2_kernel', gen_k2(), 512, K2B_LDS, 256, 256)]
    out = HDR
    for n, e, blk, lds, vg, ac in ks:
        out += f'; @launch kernel={n} grid=(256,1,1) block=({blk},1,1) lds={lds}\n'
    out += '.amdgcn_target "amdgcn-amd-amdhsa--gfx950"\n.text\n'
    for n, e, blk, lds, vg, ac in ks:
        txt = e.text()
        sm = os.environ.get('STMOD_' + n[:3].upper(), 'sc1' if n == 'k1_kernel' else '')
        if sm:
            txt = '\n'.join((l + ' ' + sm) if ('buffer_store_dwordx4' in l and 'sc1' not in l) else l for l in txt.split('\n'))
        out += f'.globl {n}\n.p2align 8\n.type {n},@function\n{n}:\n' + txt
    out += '.section .rodata,"a"\n'
    for n, e, blk, lds, vg, ac in ks:
        out += '.p2align 6\n' + kd(n, vg, ac)
    path = path or f'cdna_kernels/{NAME}.s'
    open(path, 'w').write(out)
    print('wrote', path, len(out), 'bytes;', {n: e.off for n, e, *_ in ks})
if __name__ == '__main__':
    build(sys.argv[1] if len(sys.argv) > 1 else None)
```

```python
from emit import *
import struct, os
QF = 0
VF = 4 << 20
AF = 6 << 20
W2F = 15 << 20
FLAGS = 18 << 20
PROFB = 19 << 20
XF = 20 << 20
WF = 22 << 20
WS_BYTES = 28 << 20
PROF = os.environ.get('PROF', '') != ''
ABL = os.environ.get('ABL', '').split(',')
LOG2E = 1.4426950408889634
QSCALE = 0.25 * LOG2E
def f2u(x): return struct.unpack('<I', struct.pack('<f', x))[0]
def srd(e, d, lo, nbytes):
    e.I(f's_mov_b32 s{d}, s{lo}')
    e.I(f's_and_b32 s{d+1}, s{lo+1}, 0xffff')
    e.I(f's_mov_b32 s{d+2}, {nbytes}')
    e.I(f's_mov_b32 s{d+3}, 0x20000')
def run(e, x):
    if callable(x): x(e)
    else: e.I(x)
def interleave(e, mf, fl):
    n = len(mf); m = len(fl); j = 0
    for i, x in enumerate(mf):
        run(e, x)
        tgt = (m * (i + 1) + n - 1) // n
        while j < tgt:
            run(e, fl[j]); j += 1
    while j < m:
        run(e, fl[j]); j += 1
```

```python
from common import *
KA = 64
K0_LDS = 4 * 8192 + 8192
LNS = 4 * 8192

def gen_k0():
    e = Emit(); e.prof = PROF
    V = e.I
    V('s_cmp_ge_u32 s2, 256'); V('s_cbranch_scc1 K0_END')
    V(f's_load_dwordx16 s[{KA}:{KA+15}], s[0:1], 0')
    V(f's_load_dwordx4 s[{KA+16}:{KA+19}], s[0:1], 64')
    V('v_and_b32 v1, 63, v0'); V('v_lshrrev_b32 v2, 6, v0'); V('s_nop 0'); V('v_readfirstlane_b32 s4, v2')
    V('v_lshlrev_b32 v3, 4, v1')
    V('v_lshrrev_b32 v4, 3, v1'); V('v_and_b32 v5, 7, v1'); V('v_lshlrev_b32 v5, 4, v5')
    V('v_lshrrev_b32 v6, 4, v1'); V('v_lshrrev_b32 v7, 5, v1'); V('v_bfe_u32 v8, v1, 2, 2')
    V('v_and_b32 v9, 1, v6'); V('v_lshlrev_b32 v9, 5, v9'); V('v_and_b32 v10, 3, v1'); V('v_lshl_add_u32 v9, v10, 3, v9')
    V('v_lshl_add_u32 v10, v7, 3, v8'); V('v_lshl_add_u32 v11, v10, 7, v9')
    V('v_lshl_add_u32 v10, v7, 2, v8'); V('v_lshl_add_u32 v12, v10, 7, v9')
    V('s_lshl_b32 s6, s4, 13')
    V('s_lshl_b32 s5, s2, 2'); V('s_add_u32 s5, s5, s4')
    e.smem_wait()
    srd(e, 8, KA + 18, WS_BYTES)
    srd(e, 12, KA + 0, 2048 * 1024)
    V('s_lshl_b32 s94, s2, 11'); V('s_lshl_b32 s95, s4, 8'); V('s_add_u32 s94, s94, s95'); V(f's_add_u32 s94, s94, {FLAGS + (1 << 16)}')
    e.stamp(0, 8, 94, (60, 61), vz=62)
    V('s_lshl_b32 s7, s5, 11')
    X = 16
    V(f'buffer_load_dwordx4 v[{X}:{X+3}], v3, s[12:15], s7 offen')
    V(f'buffer_load_dwordx4 v[{X+4}:{X+7}], v3, s[12:15], s7 offen offset:1024')
    V(f's_mov_b32 s16, s{KA+2}'); V(f's_mov_b32 s17, s{KA+3}'); V('s_mov_b32 s20, 3072'); V(f's_mov_b32 s18, {512*3072}')
    V('s_mov_b32 s21, 0'); V('s_mov_b32 s22, 0')
    for (lo, kp, stride, size, cbb) in ((192, KA + 8, 3584, 512 * 3584, 48), (416, KA + 10, 3584, 512 * 3584, 104),
                                        (640, KA + 12, 1024, 1792 * 1024, 0), (864, KA + 4, 1024, 512 * 1024, 0)):
        V(f's_cmp_ge_u32 s5, {lo}')
        V(f's_cselect_b32 s16, s{kp}, s16'); V(f's_cselect_b32 s17, s{kp+1}, s17')
        V(f's_cselect_b32 s20, {stride}, s20'); V(f's_cselect_b32 s18, {size}, s18')
        V(f's_cselect_b32 s21, {lo}, s21'); V(f's_cselect_b32 s22, {cbb}, s22')
    V('s_sub_u32 s21, s5, s21')
    V('s_and_b32 s17, s17, 0xffff'); V('s_mov_b32 s19, 0x20000')
    V('s_cmp_ge_u32 s5, 640'); V('s_cselect_b32 s25, 1, 0')
    V('s_lshr_b32 s26, s21, 3'); V('s_and_b32 s27, s21, 7'); V('s_and_b32 s28, s21, 7'); V('s_lshr_b32 s29, s21, 3')
    V('s_cmp_eq_u32 s25, 1'); V('s_cselect_b32 s26, s28, s26'); V('s_cselect_b32 s27, s29, s27')
    V('s_lshl_b32 s28, s27, 6'); V('s_mul_i32 s28, s28, s20'); V('s_lshl_b32 s29, s26, 7'); V('s_add_u32 s28, s28, s29')
    V('s_lshl_b32 s27, s27, 2')
    V('s_lshl_b32 s29, s26, 1'); V('s_add_u32 s24, s29, s22'); V('s_lshl_b32 s24, s24, 5'); V('s_add_u32 s24, s24, s27'); V('s_lshl_b32 s24, s24, 10'); V(f's_add_u32 s24, s24, {WF}')
    V('s_mul_i32 s29, s29, 144'); V('s_add_u32 s29, s29, s27')
    V('s_cmp_ge_u32 s5, 864'); V('s_cselect_b32 s23, 112, 0'); V('s_add_u32 s29, s29, s23'); V('s_lshl_b32 s29, s29, 10'); V(f's_add_u32 s29, s29, {W2F}')
    V(f's_mov_b32 s23, {32*1024}')
    V('s_cmp_eq_u32 s25, 1'); V('s_cselect_b32 s30, s29, s24'); V(f's_cselect_b32 s31, {144*1024}, s23')
    V('s_cmp_ge_u32 s5, 928'); V('s_cselect_b32 s18, 0, s18'); V('s_cselect_b32 s30, 0x7ff00000, s30')
    V('v_mul_lo_u32 v13, v4, s20'); V('v_add_u32 v13, v13, v5')
    V('s_lshl_b32 s23, s20, 3')
    V('s_mov_b32 m0, s6')
    for i in range(8):
        V('buffer_load_dwordx4 v13, s[16:19], s28 offen lds')
        if i < 7:
            V('s_add_u32 s28, s28, s23'); V('s_add_u32 m0, m0, 1024')
    V('s_cmp_ge_u32 s2, 32'); V('s_cbranch_scc1 K0_NOFLAG')
    st = e.cond_begin()
    V('s_lshl_b32 s33, s2, 7'); V(f's_add_u32 s33, s33, {FLAGS}'); V('v_mov_b32 v14, 0')
    V('buffer_store_dword v14, v14, s[8:11], s33 offen sc1')
    e.pad8(); e.cond_end(st); e.label('K0_NOFLAG')
    e.stamp(3, 8, 94, (60, 61), vz=62)
    V('s_mov_b32 s34, 0xffff0000'); V(f's_mov_b32 s35, 0x{f2u(1.0/512):08x}')
    F = 32; S = 24; A = 26; D = 48
    for r in range(2):
        for d in range(4):
            V(f'v_lshlrev_b32 v{F+8*r+2*d}, 16, v{X+4*r+d}'); V(f'v_and_b32 v{F+8*r+2*d+1}, s34, v{X+4*r+d}')
    def reduce2(base):
        e.nop(2)
        for ctrl in ('quad_perm:[1,0,3,2] row_mask:0xf bank_mask:0xf', 'quad_perm:[2,3,0,1] row_mask:0xf bank_mask:0xf',
                     'row_half_mirror row_mask:0xf bank_mask:0xf', 'row_mirror row_mask:0xf bank_mask:0xf',
                     'row_bcast:15 row_mask:0xa bank_mask:0xf', 'row_bcast:31 row_mask:0xc bank_mask:0xf'):
            for r in range(2):
                e.raw(f'  v_add_f32_dpp v{base+r}, v{base+r}, v{base+r} {ctrl}', 8)
            e.nop(1)
        e.nop(1)
        for r in range(2): e.raw(f'  v_readlane_b32 s{36+r}, v{base+r}, 63', 8)
        e.nop(2)
        for r in range(2): V(f'v_mul_f32 v{base+r}, s{36+r}, v28')
    V('v_mov_b32 v28, s35')
    for r in range(2):
        f = F + 8 * r
        V(f'v_add_f32 v{S+r}, v{f}, v{f+1}'); V(f'v_add_f32 v{A+r}, v{f+2}, v{f+3}')
        V(f'v_add_f32 v{S+r}, v{S+r}, v{f+4}'); V(f'v_add_f32 v{A+r}, v{A+r}, v{f+5}')
        V(f'v_add_f32 v{S+r}, v{S+r}, v{f+6}'); V(f'v_add_f32 v{A+r}, v{A+r}, v{f+7}')
        V(f'v_add_f32 v{S+r}, v{S+r}, v{A+r}')
    reduce2(S)
    for r in range(2):
        f = F + 8 * r; dd = D + 8 * r
        for i in range(8): V(f'v_sub_f32 v{dd+i}, v{f+i}, v{S+r}')
        V(f'v_mul_f32 v{A+r}, v{dd}, v{dd}')
        for i in range(1, 8): V(f'v_fma_f32 v{A+r}, v{dd+i}, v{dd+i}, v{A+r}')
    reduce2(A)
    for r in range(2):
        a = A + r; m = S + r
        V(f'v_cvt_pk_bf16_f32 v{D+r}, v{m}, v{a}')
        V(f'v_lshlrev_b32 v{m}, 16, v{D+r}'); V(f'v_and_b32 v{a}, s34, v{D+r}')
        V(f'v_add_f32 v{a}, 0x3727c5ac, v{a}')
        V(f'v_cvt_pk_bf16_f32 v{a}, v{a}, v{a}'); V(f'v_and_b32 v{a}, s34, v{a}')
        V(f'v_sqrt_f32 v{a}, v{a}')
        V(f'v_cvt_pk_bf16_f32 v{a}, v{a}, v{a}'); V(f'v_and_b32 v{a}, s34, v{a}')
        V(f'v_rcp_f32 v{a}, v{a}')
    V('v_lshlrev_b32 v14, 7, v1'); V('s_lshl_b32 s33, s4, 5'); V(f's_add_u32 s33, s33, {LNS}'); V('v_add_u32 v14, s33, v14')
    for r in range(2):
        f = F + 8 * r
        for i in range(8): V(f'v_sub_f32 v{f+i}, v{f+i}, v{S+r}')
        for d in range(4): V(f'v_cvt_pk_bf16_f32 v{D+d}, v{f+2*d}, v{f+2*d+1}')
        for d in range(4):
            V(f'v_lshlrev_b32 v{f+2*d}, 16, v{D+d}'); V(f'v_and_b32 v{f+2*d+1}, s34, v{D+d}')
        for i in range(8): V(f'v_mul_f32 v{f+i}, v{f+i}, v{A+r}')
        for d in range(4): V(f'v_cvt_pk_bf16_f32 v{X+4*r+d}, v{f+2*d}, v{f+2*d+1}')
        V(f'ds_write_b128 v14, v[{X+4*r}:{X+4*r+3}] offset:{r*16}')
    e.wait(lgkm=0); e.barrier()
    V('v_lshrrev_b32 v14, 2, v0'); V('v_and_b32 v15, 3, v0')
    V('v_lshlrev_b32 v20, 7, v14'); V('v_lshl_add_u32 v20, v15, 5, v20'); V(f'v_add_u32 v20, {LNS}, v20')
    V('ds_read_b128 v[24:27], v20'); V('ds_read_b128 v[28:31], v20 offset:16')
    V('v_lshrrev_b32 v21, 1, v14'); V('v_lshlrev_b32 v21, 10, v21'); V('v_and_b32 v22, 1, v14'); V('v_lshl_add_u32 v21, v22, 9, v21'); V('v_lshl_add_u32 v21, v15, 5, v21')
    V('s_lshr_b32 s33, s2, 2'); V('s_lshl_b32 s33, s33, 15'); V('s_and_b32 s36, s2, 3'); V('s_lshl_b32 s36, s36, 7'); V('s_add_u32 s33, s33, s36'); V(f's_add_u32 s33, s33, {XF}')
    V('buffer_store_dwordx4 v[24:27], v21, s[8:11], s33 offen sc1'); V('buffer_store_dwordx4 v[28:31], v21, s[8:11], s33 offen offset:16 sc1')
    e.stamp(1, 8, 94, (60, 61), vz=62)
    e.I(f's_waitcnt vmcnt(2)')
    e.vm_done = max(e.vm_done, e.vm - 2)
    V('s_cmp_eq_u32 s25, 1'); V('s_cselect_b64 vcc, -1, 0'); V('v_cndmask_b32 v13, v11, v12, vcc')
    V('s_movk_i32 s24, 512'); V('s_cselect_b32 s23, 1024, s24')
    V('v_add_u32 v13, s6, v13'); V('v_add_u32 v14, s23, v13')
    B = 64
    for k4 in range(4):
        for q in range(2):
            b = B + 8 * k4 + 4 * q
            V(f'ds_read_b64_tr_b16 v[{b}:{b+1}], v13 offset:{k4*2048 + q*64}')
            V(f'ds_read_b64_tr_b16 v[{b+2}:{b+3}], v14 offset:{k4*2048 + q*64}')
    V('s_add_u32 s32, s30, s31')
    for k4 in range(4):
        for q in range(2):
            b = B + 8 * k4 + 4 * q
            V(f'buffer_store_dwordx4 v[{b}:{b+3}], v3, s[8:11], s{30 if q == 0 else 32} offen offset:{k4*1024} sc1')
    e.stamp(2, 8, 94, (60, 61), vz=62)
    e.label('K0_END')
    V('s_endpgm')
    return e
if __name__ == '__main__':
    e = gen_k0(); print(e.off, e.stats, e.nnop)
```

```python
from emit import *
import struct, os

QF = 0
VF = 4 << 20
AF = 6 << 20
W2F = 15 << 20
FLAGS = 18 << 20
WS_BYTES = 20 << 20
PROFB = 19 << 20
PROF = os.environ.get('PROF', '') != ''
ABL = os.environ.get('ABL', '').split(',')

LOG2E = 1.4426950408889634
QSCALE = 0.25 * LOG2E
def f2u(x): return struct.unpack('<I', struct.pack('<f', x))[0]

SLOT = 8192
NSLOT = 20
W2P = 1 * SLOT
XCH = 0
XCH_STAT = XCH
XCH_CS = XCH + 4096
XCH_RS = XCH + 7168
K1_LDS = 163840
K1_THREADS = 256

KA = 64
SRD_X, SRD_QKV, SRD_G, SRD_U, SRD_WS, SRD_WD, SRD_WO = 8, 12, 16, 20, 24, 28, 32
S_UB = 36; S_XB = 41; S_W2K = 42; S_T = 43; S_INV512 = 44; S_RH = 45; S_MASK = 46; S_C = 47
S_OUT = 48
S_ONES = 55; S_QSC = 56; S_WAVE = 57; S_MT = 58; S_P = 59; S_R = 60; S_T2 = 61; S_T3 = 62; S_RH2K = 63

V_DW = 1; V_DQ = 3; V_DX = 5
V_WR = 7
V_L16 = 10; V_VST = 11
V_SEL = 12
V_NRL = 16; V_IRS = 18; V_RSQ = 20; V_RST = 22
V_CS = 24
V_XAUG = 28
V_WAUG = 36
V_XCR = 40; V_XCC = 41; V_CSR = 42; V_RSW = 43; V_RSR = 44; V_NEGHF = 45; V_W2R = 46; V_W2D = 47
V_T = 48
V_CA = 56
V_XR = 60
V_XS = 72
V_ST = 80
V_SF = 88
V_CB = 104
NWB = 10
V_WF = 112
V_ACC = 160
WBUF = [V_WF + 4*i for i in range(NWB)]
def acc(slot, rbk): return V_ACC + (slot * 2 + rbk) * 16
def xa(rbk, t): return (rbk * 32 + t) * 4

def srd(e, d, lo, nbytes):
    e.I(f's_mov_b32 s{d}, s{lo}')
    e.I(f's_and_b32 s{d+1}, s{lo+1}, 0xffff')
    e.I(f's_mov_b32 s{d+2}, {nbytes}')
    e.I(f's_mov_b32 s{d+3}, 0x20000')

def run(e, x):
    if callable(x): x(e)
    else: e.I(x)

def interleave(e, mf, fl):
    n = len(mf); m = len(fl); j = 0
    for i, x in enumerate(mf):
        run(e, x)
        tgt = (m * (i + 1) + n - 1) // n
        while j < tgt:
            run(e, fl[j]); j += 1
    while j < m:
        run(e, fl[j]); j += 1

class Ring:
    def __init__(self):
        self.free = list(range(NSLOT)); self.items = []; self.next = 0; self.slot = {}; self.seq = {}
    def alloc(self, item):
        if item[0] == 'x':
            if item[1] == 0:
                c = [s_ for s_ in range(0, NSLOT, 2) if s_ in self.free and s_ + 1 in self.free and (s_ >= 4 or item[2] < 4)]
                if not c: return None
                sl = c[0]
            else:
                sl = self.slot[('x', 0, item[2])] + 1
        else:
            cand = [s_ for s_ in self.free if s_ >= 3 and (not self.x_pending() or (s_ ^ 1) not in self.free)] or [s_ for s_ in self.free if s_ >= 3]
            if not cand: return None
            sl = max(cand)
        self.free.remove(sl); self.slot[item] = sl
        return sl
    def x_pending(self):
        return any(it[0] == 'x' for it in self.items[self.next:])

def k1_prologue(e):
    V = e.I
    V('s_cmp_ge_u32 s2, 256')
    V('s_cbranch_scc1 K1_END')
    V(f's_load_dwordx16 s[{KA}:{KA+15}], s[0:1], 0')
    V(f's_load_dwordx4 s[{KA+16}:{KA+19}], s[0:1], 64')
    V('s_and_b32 s3, s2, 7'); V('s_lshr_b32 s4, s2, 3')
    if os.environ.get('XMAP', '0') == '1':
        V('s_lshl_b32 s5, s3, 1'); V('s_and_b32 s6, s4, 1'); V(f's_add_u32 s{S_MT}, s5, s6')
        V(f's_lshr_b32 s{S_P}, s4, 3'); V(f's_bfe_u32 s{S_R}, s4, 0x20001')
    else:
        V('s_and_b32 s5, s3, 1'); V('s_lshl_b32 s5, s5, 3'); V('s_and_b32 s6, s4, 7')
        V(f's_add_u32 s{S_MT}, s5, s6'); V(f's_lshr_b32 s{S_P}, s3, 1'); V(f's_lshr_b32 s{S_R}, s4, 3')
    L, A, B, C = 160, 161, 162, 163
    V(f'v_and_b32 v{L}, 63, v0')
    if 'nopf' not in ABL:
        V('s_getpc_b64 s[90:91]')
        e.label('K1_PF')
        V('v_lshrrev_b32 v255, 6, v0')
        V('s_lshl_b32 s92, s4, 2')
        V('v_add_u32 v255, s92, v255')
        e.raw('  v_min_u32 v255, (CODE_END-K1_PF)/1024-1, v255', 8)
        V('v_lshlrev_b32 v255, 10, v255')
        V(f'v_lshl_add_u32 v255, v{L}, 4, v255')
        V('global_load_dwordx4 v[248:251], v255, s[90:91]')
    V(f'v_lshrrev_b32 v{A}, 6, v0')
    V('s_nop 0')
    V(f'v_readfirstlane_b32 s{S_WAVE}, v{A}')
    V(f's_mov_b32 s{S_MASK}, 0xffff0000')
    V(f's_mov_b32 s{S_INV512}, 0x{f2u(1.0/512):08x}')
    V(f's_lshr_b32 s{S_RH}, s{S_WAVE}, 1')
    V(f's_and_b32 s{S_C}, s{S_WAVE}, 1')
    V(f's_lshl_b32 s{S_W2K}, s{S_WAVE}, 11')
    V(f's_lshl_b32 s{S_XB}, s{S_MT}, 17')
    V(f's_lshl_b32 s{S_RH2K}, s{S_RH}, 11')
    V(f's_mov_b32 s{S_ONES}, 0x3f803f80')
    V(f'v_lshlrev_b32 v{V_L16}, 4, v{L}')
    G4, L7, R0 = 164, 165, 166
    V(f'v_lshrrev_b32 v{R0}, 3, v{L}')
    V(f'v_lshrrev_b32 v{G4}, 4, v{L}')
    V(f'v_and_b32 v{L7}, 7, v{L}')
    V(f's_lshl_b32 s{S_T}, s{S_WAVE}, 4')
    V(f'v_add_u32 v{R0}, s{S_T}, v{R0}')
    for j in range(2):
        V(f'v_add_u32 v{A}, {4*j}, v{G4}'); V(f'v_and_b32 v{A}, 7, v{A}'); V(f'v_xor_b32 v{A}, v{L7}, v{A}'); V(f'v_lshlrev_b32 v{A}, 4, v{A}')
        V(f'v_lshl_add_u32 v{V_DX+j}, v{R0}, 10, v{A}')
        if j: V(f'v_add_u32 v{V_DX+j}, {8*1024 - 1024}, v{V_DX+j}')
    V(f'v_lshrrev_b32 v{A}, 2, v{L}'); V(f'v_xor_b32 v{A}, v{A}, v{G4}'); V(f'v_and_b32 v{A}, 1, v{A}'); V(f'v_lshlrev_b32 v{A}, 6, v{A}')
    V(f'v_and_b32 v{B}, 3, v{L}'); V(f'v_lshl_add_u32 v{A}, v{B}, 4, v{A}')
    for (vd, stride) in ((V_DW, 3584), (V_DQ, 3072)):
        V(f's_mov_b32 s{S_T}, {stride}')
        V(f'v_mul_lo_u32 v{B}, v{R0}, s{S_T}')
        V(f'v_add_u32 v{vd}, v{B}, v{A}')
        V(f'v_add_u32 v{vd+1}, {8*stride - 1024}, v{vd}')
    ROW, HF = 167, 168
    V(f'v_and_b32 v{ROW}, 31, v{L}'); V(f'v_lshrrev_b32 v{HF}, 5, v{L}')
    V(f'v_lshrrev_b32 v{A}, 1, v{ROW}'); V(f'v_and_b32 v{A}, 7, v{A}')
    V(f's_lshl_b32 s{S_T}, s{S_RH}, 13')
    V(f'v_lshlrev_b32 v{B}, 7, v{ROW}'); V(f'v_add_u32 v{B}, s{S_T}, v{B}')
    for ks in range(4):
        V(f'v_add_u32 v{C}, {2*ks}, v{HF}'); V(f'v_xor_b32 v{C}, v{C}, v{A}')
        V(f'v_lshl_add_u32 v{V_XR+ks}, v{C}, 4, v{B}')
    V(f's_cmp_eq_u32 s{S_C}, 1'); V('s_cselect_b64 vcc, -1, 0')
    V(f'v_cndmask_b32 v{V_XS}, v{V_XR}, v{V_XR+1}, vcc')
    V(f'v_cndmask_b32 v{V_XS+1}, v{V_XR+2}, v{V_XR+3}, vcc')
    for pg in (1, 2):
        for i in range(4): V(f'v_add_u32 v{V_XR+4*pg+i}, {pg*0x10000}, v{V_XR+i}')
        for i in range(2): V(f'v_add_u32 v{V_XS+2*pg+i}, {pg*0x10000}, v{V_XS+i}')
    V(f'v_bfe_u32 v{A}, v{L}, 2, 2')
    V(f'v_lshl_add_u32 v{B}, v{HF}, 3, v{A}'); V(f'v_lshlrev_b32 v{B}, 7, v{B}')
    V(f'v_lshrrev_b32 v{C}, 1, v{A}'); V(f'v_xor_b32 v{C}, s{S_C}, v{C}'); V(f'v_lshl_add_u32 v{B}, v{C}, 6, v{B}')
    V(f'v_and_b32 v{C}, 1, v{G4}'); V(f'v_lshl_add_u32 v{B}, v{C}, 5, v{B}')
    V(f'v_and_b32 v{C}, 3, v{L}'); V(f'v_lshl_add_u32 v{V_WR}, v{C}, 3, v{B}')
    V(f'v_add_u32 v{V_WR+1}, 0x10000, v{V_WR}'); V(f'v_add_u32 v{V_WR+2}, 0x20000, v{V_WR}')
    V(f'v_and_b32 v{A}, 15, v{L}'); V(f'v_lshlrev_b32 v{A}, 4, v{A}'); V(f'v_lshl_add_u32 v{A}, v{HF}, 8, v{A}')
    V(f'v_and_b32 v{C}, 1, v{G4}'); V(f'v_lshl_add_u32 v{V_VST}, v{C}, 16, v{A}')
    V(f's_lshl_b32 s{S_T}, s{S_RH}, 6')
    V(f'v_add_u32 v{A}, s{S_T}, v{ROW}')
    V(f'v_lshlrev_b32 v{B}, 5, v{A}'); V(f'v_add_u32 v{V_XCR}, {XCH_STAT}, v{B}')
    V(f'v_lshlrev_b32 v{B}, 2, v{A}'); V(f'v_add_u32 v{V_RSW}, {XCH_RS}, v{B}')
    V(f's_lshl_b32 s{S_T}, s{S_RH}, 8')
    V(f'v_lshlrev_b32 v{B}, 4, v{HF}'); V(f'v_add_u32 v{B}, s{S_T}, v{B}'); V(f'v_add_u32 v{V_RSR}, {XCH_RS}, v{B}')
    V(f's_lshl_b32 s{S_T}, s{S_C}, 8')
    V(f'v_lshlrev_b32 v{B}, 3, v{ROW}'); V(f'v_add_u32 v{V_CSR}, s{S_T}, v{B}')
    V(f's_lshl_b32 s{S_T}, s{S_RH}, 2'); V(f'v_add_u32 v{V_XCC}, s{S_T}, v{V_CSR}')
    V(f'v_lshrrev_b32 v{A}, 2, v{L}'); V(f'v_xor_b32 v{A}, v{A}, v{G4}'); V(f'v_and_b32 v{A}, 1, v{A}')
    V(f'v_and_b32 v{B}, 3, v{L}'); V(f'v_or_b32 v{A}, v{A}, v{B}'); V(f'v_cmp_eq_u32 vcc, 0, v{A}')
    V(f'v_mov_b32 v{B}, 0x3f803f80'); V(f'v_cndmask_b32 v{V_SEL}, 0, v{B}, vcc')
    for i in range(1, 4): V(f'v_mov_b32 v{V_SEL+i}, v{V_SEL}')
    V(f'v_cmp_eq_u32 vcc, 0, v{HF}'); V(f'v_mov_b32 v{B}, -1.0'); V(f'v_cndmask_b32 v{V_NEGHF}, 0, v{B}, vcc')
    V(f'v_and_b32 v{A}, 15, v{L}'); V(f'v_lshlrev_b32 v{A}, 4, v{A}'); V(f'v_lshl_add_u32 v{A}, v{G4}, 10, v{A}')
    V(f's_lshl_b32 s{S_T}, s{S_WAVE}, 8'); V(f'v_add_u32 v{V_W2D}, s{S_T}, v{A}')
    V(f'v_bfe_u32 v{A}, v{L}, 2, 2'); V(f'v_lshl_add_u32 v{A}, v{HF}, 2, v{A}'); V(f'v_lshlrev_b32 v{A}, 8, v{A}')
    V(f'v_and_b32 v{C}, 1, v{G4}'); V(f'v_lshl_add_u32 v{A}, v{C}, 5, v{A}')
    V(f'v_and_b32 v{C}, 3, v{L}'); V(f'v_lshl_add_u32 v{A}, v{C}, 3, v{A}')
    V(f's_lshl_b32 s{S_T}, s{S_WAVE}, 12'); V(f's_add_u32 s{S_T}, s{S_T}, {W2P}'); V(f'v_add_u32 v{V_W2R}, s{S_T}, v{A}')
    e.smem_wait()
    srd(e, SRD_X, KA + 0, 2048 * 1024)
    srd(e, SRD_QKV, KA + 2, 512 * 3072)
    srd(e, SRD_G, KA + 8, 512 * 3584)
    srd(e, SRD_U, KA + 10, 512 * 3584)
    srd(e, SRD_WS, KA + 18, WS_BYTES)
    srd(e, SRD_WD, KA + 12, 1792 * 1024)
    srd(e, SRD_WO, KA + 4, 512 * 1024)
    V(f's_lshl_b32 s{S_T2}, s{S_MT}, 2'); V(f's_lshl_b32 s{S_T}, s{S_RH}, 1'); V(f's_add_u32 s{S_T2}, s{S_T2}, s{S_T}')
    V('s_lshl_b32 s94, s2, 11'); V(f's_lshl_b32 s95, s{S_WAVE}, 8'); V('s_add_u32 s94, s94, s95'); V(f's_add_u32 s94, s94, {PROFB}')
    e.stamp(0, SRD_WS, 94, (58, 59), vz=57)
    V('s_cmp_ge_u32 s2, 32')
    V('s_cbranch_scc1 K1_NOFLAG')
    st = e.cond_begin()
    V(f's_lshl_b32 s{S_T}, s2, 7'); V(f's_add_u32 s{S_T}, s{S_T}, {FLAGS}')
    V('v_mov_b32 v160, 0')
    V(f'buffer_store_dword v160, v160, s[{SRD_WS}:{SRD_WS+3}], s{S_T} offen sc1')
    e.pad8(); e.cond_end(st); e.label('K1_NOFLAG')
    V(f's_cmp_eq_u32 s{S_R}, 3')
    V('s_cbranch_scc1 K1_TYPEB')

def out_gu(e, sdst, s_pu):
    e.I(f's_lshl_b32 s{S_T}, s{s_pu}, 1'); e.I(f's_add_u32 s{S_T}, s{S_T}, s{S_C}'); e.I(f's_lshl_b32 s{S_T}, s{S_T}, 1')
    e.I(f's_mul_i32 s{S_T3}, s{S_T2}, 144'); e.I(f's_add_u32 s{S_T}, s{S_T}, s{S_T3}')
    e.I(f's_lshl_b32 s{S_T}, s{S_T}, 10'); e.I(f's_add_u32 s{sdst}, s{S_T}, {AF}')
    e.I(f's_add_u32 s{sdst+1}, s{sdst}, {144*1024}')

def out_head(e, sdst, s_unit, n):
    e.I(f's_lshl_b32 s{S_T}, s{s_unit}, 1'); e.I(f's_add_u32 s{S_T}, s{S_T}, s{S_C}'); e.I(f's_lshl_b32 s{S_T}, s{S_T}, 17')
    e.I(f's_lshl_b32 s{S_T3}, s{S_T2}, 10'); e.I(f's_add_u32 s{sdst}, s{S_T}, s{S_T3}')
    if n > 1: e.I(f's_add_u32 s{sdst+1}, s{sdst}, 65536')

def k1_body(e, typ):
    pfx = f'K1{typ}'
    U = 84
    O_GU0, O_GU1, O_V1, O_V2, O_QK = S_OUT, S_OUT + 2, S_OUT + 2, S_OUT + 3, S_OUT + 4
    if typ == 'A':
        kinds = ['G', 'U', 'G', 'U', 'Q']
        e.I(f's_mul_i32 s{U}, s{S_P}, 3'); e.I(f's_add_u32 s{U}, s{U}, s{S_R}')
        e.I(f's_lshl_b32 s{U+1}, s{U}, 1'); e.I(f's_add_u32 s{U+2}, s{U+1}, 1')
        e.I(f's_lshl_b32 s{S_UB+0}, s{U+1}, 7'); e.I(f's_mov_b32 s{S_UB+1}, s{S_UB+0}')
        e.I(f's_lshl_b32 s{S_UB+2}, s{U+2}, 7'); e.I(f's_mov_b32 s{S_UB+3}, s{S_UB+2}')
        e.I(f's_lshl_b32 s{S_UB+4}, s{U}, 7')
        out_gu(e, O_GU0, U + 1); out_gu(e, O_GU1, U + 2)
        out_head(e, O_QK, U, 2)
        e.I(f's_cmp_lt_u32 s{U}, 8'); e.I(f's_cselect_b32 s{S_QSC}, 0x{f2u(QSCALE):08x}, 1.0')
    else:
        kinds = ['G', 'U', 'Q', 'Q', 'Q']
        e.I(f's_add_u32 s{U}, s{S_P}, 24'); e.I(f's_add_u32 s{U+1}, s{S_P}, 12')
        e.I(f's_lshl_b32 s{U+2}, s{S_P}, 1'); e.I(f's_add_u32 s{U+2}, s{U+2}, 16'); e.I(f's_add_u32 s{U+3}, s{U+2}, 1')
        e.I(f's_lshl_b32 s{S_UB+0}, s{U}, 7'); e.I(f's_mov_b32 s{S_UB+1}, s{S_UB+0}')
        e.I(f's_lshl_b32 s{S_UB+2}, s{U+2}, 7'); e.I(f's_lshl_b32 s{S_UB+3}, s{U+3}, 7'); e.I(f's_lshl_b32 s{S_UB+4}, s{U+1}, 7')
        out_gu(e, O_GU0, U)
        out_head(e, O_V1, U + 2, 1); out_head(e, O_V2, U + 3, 1); out_head(e, O_QK, U + 1, 2)
        e.I(f's_mov_b32 s{S_QSC}, 1.0')
    usrd = {'G': SRD_G, 'U': SRD_U, 'Q': SRD_QKV}
    ustride = {'G': 3584, 'U': 3584, 'Q': 3072}
    uvd = {'G': V_DW, 'U': V_DW, 'Q': V_DQ}
    isV = [False, False, typ == 'B', typ == 'B', False]

    ring = Ring()
    started = [False]
    for s_ in range(8):
        ring.items += [('w', 0, s_), ('x', 0, s_), ('x', 1, s_)]
    for u in (1, 2, 3, 4):
        for s_ in range(8): ring.items.append(('w', u, s_))
    uslot = [0, 1, 2, 0, 1]

    def dma_item(item):
        sl = ring.slot[item]
        if item[0] == 'x':
            _, hx, s_ = item
            so = f's_add_u32 s{S_T}, s{S_XB}, {hx*65536 + s_*128}'; vd = V_DX; sr = SRD_X
        else:
            _, u, s_ = item; k = kinds[u]
            so = f's_add_u32 s{S_T}, s{S_UB+u}, {s_*64*ustride[k]}'; vd = uvd[k]; sr = usrd[k]
        def f1(e):
            if 'nodma' in ABL and started[0]: return
            e.I(so); e.I(f's_add_u32 m0, s{S_W2K}, {sl*SLOT}')
            e.I(f'buffer_load_dwordx4 v{vd}, s[{sr}:{sr+3}], s{S_T} offen lds')
        def f2(e):
            if 'nodma' in ABL and started[0]:
                ring.seq[item] = 0; return
            ring.seq[item] = e.I(f'buffer_load_dwordx4 v{vd+1}, s[{sr}:{sr+3}], s{S_T} offen offset:1024 lds')
        def f(e):
            f1(e); f2(e)
        return f
    def refill():
        ops = []
        while ring.next < len(ring.items):
            it = ring.items[ring.next]
            if ring.alloc(it) is None: break
            ring.next += 1
            ops.append(dma_item(it))
        return ops
    def release(items):
        for it in items: ring.free.append(ring.slot[it])
    def wread(tau):
        u, t_ = tau >> 5, tau & 31
        dst = WBUF[tau % NWB]
        sl = ring.slot[('w', u, t_ >> 2)]
        base = sl * SLOT + (t_ & 3) * 2048
        out = []
        for rd in range(2):
            ad = base + rd * 512
            out.append(f'ds_read_b64_tr_b16 v[{dst+2*rd}:{dst+2*rd+1}], v{V_WR + (ad >> 16)} offset:{ad & 0xffff}')
        return out
    def csread(u, s_):
        sl = ring.slot[('w', u, s_)]
        base = sl * SLOT
        out = [f'v_add_u32 v{V_CA}, s{S_RH2K}, v{V_WR + (base >> 16)}']
        for h in range(2):
            for rd in range(2):
                ad = (base & 0xffff) + h * 4096 + rd * 512
                out.append(f'ds_read_b64_tr_b16 v[{V_CB+4*h+2*rd}:{V_CB+4*h+2*rd+1}], v{V_CA} offset:{ad}')
        return out
    def csmm(s_, h):
        c = '0' if (s_ == 0 and h == 0) else f'v[{V_CS}:{V_CS+3}]'
        return [f'v_mfma_f32_16x16x32_bf16 v[{V_CS}:{V_CS+3}], v[{V_SEL}:{V_SEL+3}], v[{V_CB+4*h}:{V_CB+4*h+3}], {c}']
    def xread(t_):
        sl0 = ring.slot[('x', 0, t_ >> 2)]; ad = sl0 * SLOT
        return [f'ds_read_b128 a[{xa(rbk,t_)}:{xa(rbk,t_)+3}], v{V_XR + 4*(ad >> 16) + (t_ & 3)} offset:{(ad & 0xffff) + rbk*4096}' for rbk in range(2)]
    def sread(t_):
        sl0 = ring.slot[('x', 0, t_ >> 2)]; ad = sl0 * SLOT
        b = V_SF + 8 * ((t_ >> 1) & 1)
        return [f'ds_read_b128 v[{b+4*rbk}:{b+4*rbk+3}], v{V_XS + 2*(ad >> 16) + ((t_ & 3) >> 1)} offset:{(ad & 0xffff) + rbk*4096}' for rbk in range(2)]
    def stat_ops(t_):
        b = V_SF + 8 * ((t_ >> 1) & 1)
        out = []
        for d in range(4):
            for rbk in range(2):
                st = V_ST + 4 * rbk; r = b + 4 * rbk + d
                out += [f'v_dot2c_f32_bf16 v{st + (d & 1)}, s{S_ONES}, v{r}', f'v_dot2c_f32_bf16 v{st + 2 + (d & 1)}, v{r}, v{r}']
        return out
    def mm(tau):
        u, t_ = tau >> 5, tau & 31
        wf = WBUF[tau % NWB]; out = []
        for rbk in range(2):
            d = acc(uslot[u], rbk)
            c = '0' if t_ == 0 else f'v[{d}:{d+15}]'
            X = f'a[{xa(rbk,t_)}:{xa(rbk,t_)+3}]'; W = f'v[{wf}:{wf+3}]'
            A, B = (X, W) if isV[u] else (W, X)
            out.append(f'v_mfma_f32_32x32x16_bf16 v[{d}:{d+15}], {A}, {B}, {c}')
        return out
    def rsync(need, drain=False):
        def f(e):
            if 'nosync' in ABL: return
            if drain: e.wait(lgkm=0)
            e.wait_vm_seq(max(ring.seq[i] for i in need))
            e.barrier()
        return f
    BAR = lambda e: (e.wait(lgkm=0), e.barrier())

    w2mark = [0]
    def w2prep_dma(e):
        w2mark[0] = e.vm
        e.I('s_cmp_ge_u32 s2, 144')
        e.I(f's_cbranch_scc1 {pfx}_w2a')
        st = e.cond_begin()
        e.I(f's_lshl_b32 s{S_T}, s2, 14')
        e.I(f's_lshl_b32 s{S_T3}, s{S_WAVE}, 12')
        e.I(f's_add_u32 m0, s{S_T3}, {W2P}')
        e.I('s_cmp_ge_u32 s2, 112')
        e.I(f's_cbranch_scc1 {pfx}_w2o')
        for i in range(4):
            e.I(f'buffer_load_dwordx4 v{V_W2D}, s[{SRD_WD}:{SRD_WD+3}], s{S_T} offen offset:{i*1024} lds')
            e.I(f's_add_u32 s{S_T}, s{S_T}, {4096 - 1024}')
        e.I(f's_branch {pfx}_w2a')
        e.pad8(); e.label(f'{pfx}_w2o')
        e.I(f's_sub_u32 s{S_T}, s{S_T}, {112*16384}')
        for i in range(4):
            e.I(f'buffer_load_dwordx4 v{V_W2D}, s[{SRD_WO}:{SRD_WO+3}], s{S_T} offen offset:{i*1024} lds')
            e.I(f's_add_u32 s{S_T}, s{S_T}, {4096 - 1024}')
        e.pad8(); e.cond_end(st); e.label(f'{pfx}_w2a')
    def w2prep_proc(e):
        e.I('s_cmp_ge_u32 s2, 144')
        e.I(f's_cbranch_scc1 {pfx}_w2b')
        st = e.cond_begin()
        e.I(f's_mul_i32 s{S_T}, s{S_WAVE}, {4*144}'); e.I(f's_add_u32 s{S_T}, s{S_T}, s2')
        e.I(f's_lshl_b32 s{S_T}, s{S_T}, 10'); e.I(f's_add_u32 s{S_T}, s{S_T}, {W2F}')
        e.I(f's_waitcnt vmcnt({min(63, e.vm - w2mark[0])})')
        B = V_SF
        for q in range(4):
            for rd in range(2):
                e.I(f'ds_read_b64_tr_b16 v[{B+4*q+2*rd}:{B+4*q+2*rd+1}], v{V_W2R} offset:{q*64 + rd*2048}')
        e.wait(lgkm=0)
        for q in range(4):
            e.I(f'buffer_store_dwordx4 v[{B+4*q}:{B+4*q+3}], v{V_L16}, s[{SRD_WS}:{SRD_WS+3}], s{S_T} offen')
            if q < 3: e.I(f's_add_u32 s{S_T}, s{S_T}, {144*1024}')
        e.nop(2)
        e.pad8(); e.cond_end(st); e.label(f'{pfx}_w2b')

    def stats_write():
        out = [f's_lshl_b32 s{S_T3}, s{S_C}, 4',
               f'v_lshrrev_b32 v{V_T+1}, 5, v{V_L16}', f'v_and_b32 v{V_T+1}, 0x10, v{V_T+1}', f'v_lshrrev_b32 v{V_T+1}, 1, v{V_T+1}',
               f'v_add3_u32 v{V_T+1}, v{V_T+1}, s{S_T3}, v{V_XCR}']
        for rbk in range(2):
            st = V_ST + 4 * rbk
            out += [f'v_add_f32 v{st}, v{st}, v{st+1}', f'v_add_f32 v{st+1}, v{st+2}, v{st+3}',
                    f'ds_write_b64 v{V_T+1}, v[{st}:{st+1}] offset:{rbk*1024}']
        return out
    def cs_write(region):
        return [f'ds_write_b32 v{V_XCC}, v{V_CS} offset:{XCH_CS + region*1024}']
    def stats_fin():
        rd = []; chains = []
        for rbk in range(2):
            a = V_SF + 8 * rbk; b = a + 4
            rd += [f'ds_read_b128 v[{a}:{a+3}], v{V_XCR} offset:{rbk*1024}', f'ds_read_b128 v[{b}:{b+3}], v{V_XCR} offset:{rbk*1024+16}']
            xg = V_XAUG + 4 * rbk
            ch = [f'v_add_f32 v{a}, v{a}, v{a+2}', f'v_add_f32 v{a+1}, v{a+1}, v{a+3}',
                  f'v_add_f32 v{b}, v{b}, v{b+2}', f'v_add_f32 v{b+1}, v{b+1}, v{b+3}',
                  f'v_add_f32 v{a}, v{a}, v{b}', f'v_add_f32 v{a+1}, v{a+1}, v{b+1}',
                  f'v_mul_f32 v{a}, s{S_INV512}, v{a}', f'v_mul_f32 v{a+1}, s{S_INV512}, v{a+1}',
                  f'v_fma_f32 v{a+1}, -v{a}, v{a}, v{a+1}', f'v_max_f32 v{a+1}, 0, v{a+1}',
                  f'v_cvt_pk_bf16_f32 v{a+2}, v{a}, v{a+1}',
                  f'v_and_b32 v{a+1}, s{S_MASK}, v{a+2}', f'v_lshlrev_b32 v{a}, 16, v{a+2}',
                  f'v_add_f32 v{a+1}, 0x3727c5ac, v{a+1}',
                  f'v_mul_f32 v{a}, v{a}, v{V_NEGHF}',
                  f'v_cvt_pk_bf16_f32 v{a+1}, v{a+1}, v{a+1}', f'v_cvt_pk_bf16_f32 v{xg}, v{a}, v{a}',
                  f'v_and_b32 v{a+1}, s{S_MASK}, v{a+1}',
                  f'v_sqrt_f32 v{a+1}, v{a+1}',
                  f'v_mov_b32 v{xg+1}, 0', f'v_mov_b32 v{xg+2}, 0',
                  f'v_cvt_pk_bf16_f32 v{a+1}, v{a+1}, v{a+1}', f'v_mov_b32 v{xg+3}, 0',
                  f'v_and_b32 v{V_IRS+rbk}, s{S_MASK}, v{a+1}',
                  f'v_rcp_f32 v{V_RST+rbk}, v{V_IRS+rbk}',
                  f'v_mov_b32 v{V_WAUG+1+rbk}, 0', f'v_mov_b32 v{V_WAUG+3}, 0',
                  f'v_mul_f32 v{V_NRL+rbk}, 0x{f2u(-LOG2E):08x}, v{V_RST+rbk}',
                  f'v_mul_f32 v{V_RSQ+rbk}, s{S_QSC}, v{V_RST+rbk}']
            if typ == 'B': ch += [f'ds_write_b32 v{V_RSW}, v{V_RST+rbk} offset:{rbk*128}']
            chains.append(ch)
        mix = [x for pair in zip(*chains) for x in pair]
        return rd + ['MARK'] + mix
    def aug(region, u):
        t0 = V_T; w = V_WAUG
        out = [f'ds_read_b64 v[{t0}:{t0+1}], v{V_CSR} offset:{XCH_CS + region*1024}', 'MARK',
               f'v_add_f32 v{t0}, v{t0}, v{t0+1}',
               f'v_cvt_pk_bf16_f32 v{t0+1}, v{t0}, v{t0}', f'v_and_b32 v{t0+1}, s{S_MASK}, v{t0+1}',
               f'v_sub_f32 v{t0+1}, v{t0}, v{t0+1}', f'v_cvt_pk_bf16_f32 v{w}, v{t0}, v{t0+1}', 'MARK']
        for rbk in range(2):
            d = acc(uslot[u], rbk)
            X = f'v[{V_XAUG+4*rbk}:{V_XAUG+4*rbk+3}]'; W = f'v[{w}:{w+3}]'
            A, B = (X, W) if isV[u] else (W, X)
            out.append(f'v_mfma_f32_32x32x16_bf16 v[{d}:{d+15}], {A}, {B}, v[{d}:{d+15}]')
        return out + ['MARK']
    def epi_gu(sg, su, sout):
        out = []
        for rbk in range(2):
            G = acc(sg, rbk); Ur = acc(su, rbk)
            for hh in range(2):
                ix = range(8 * hh, 8 * hh + 8)
                out += [f'v_mul_f32 v{G+i}, v{G+i}, v{V_NRL+rbk}' for i in ix]
                out += [f'v_exp_f32 v{G+i}, v{G+i}' for i in ix]
                out += [f'v_fma_f32 v{G+i}, v{G+i}, v{V_IRS+rbk}, v{V_IRS+rbk}' for i in ix]
                out += [f'v_rcp_f32 v{G+i}, v{G+i}' for i in ix]
                out += [f'v_mul_f32 v{Ur+i}, v{Ur+i}, v{G+i}' for i in ix]
                b = 8 * hh
                out += [f'v_cvt_pk_bf16_f32 v{G+b+j}, v{Ur+b+2*j}, v{Ur+b+2*j+1}' for j in range(4)]
                out.append(f'buffer_store_dwordx4 v[{G+b}:{G+b+3}], v{V_L16}, s[{SRD_WS}:{SRD_WS+3}], s{sout+rbk} offen offset:{hh*1024}')
        return out
    def epi_qk(sl, sout):
        out = []
        for rbk in range(2):
            D = acc(sl, rbk)
            out += [f'v_mul_f32 v{D+i}, v{D+i}, v{V_RSQ+rbk}' for i in range(16)]
            for hd in range(2):
                b = D + 8 * hd
                out += [f'v_cvt_pk_bf16_f32 v{b+j}, v{b+2*j}, v{b+2*j+1}' for j in range(4)]
                out.append(f'buffer_store_dwordx4 v[{b}:{b+3}], v{V_L16}, s[{SRD_WS}:{SRD_WS+3}], s{sout+hd} offen offset:{rbk*1024}')
        return out
    def epi_v(sl, sout):
        out = []
        for rbk in range(2):
            D = acc(sl, rbk); T = V_SF
            out += [f'ds_read_b128 v[{T+4*j}:{T+4*j+3}], v{V_RSR} offset:{rbk*128 + j*32}' for j in range(4)] + ['MARK']
            out += [f'v_mul_f32 v{D+i}, v{D+i}, v{T+i}' for i in range(16)]
            for t2 in range(2):
                b = D + 8 * t2
                out += [f'v_cvt_pk_bf16_f32 v{b+j}, v{b+2*j}, v{b+2*j+1}' for j in range(4)]
                out.append(f'buffer_store_dwordx4 v[{b}:{b+3}], v{V_VST}, s[{SRD_WS}:{SRD_WS+3}], s{sout} offen offset:{rbk*1024 + t2*512}')
        return out

    init = refill()
    NPRE = 9
    for op in init[:NPRE]: run(e, op)
    started[0] = True
    if 'notouch' not in ABL:
        TT = 240
        e.I(f'v_lshrrev_b32 v{TT}, 4, v{V_L16}')
        e.I(f'v_lshrrev_b32 v{TT+1}, 3, v{TT}'); e.I(f'v_and_b32 v{TT+2}, 7, v{TT}')
        e.I(f'v_lshlrev_b32 v{TT+1}, 10, v{TT+1}'); e.I(f'v_lshl_add_u32 v{TT+1}, v{TT+2}, 7, v{TT+1}')
        e.I(f's_lshl_b32 s{S_T}, s{S_R}, 15'); e.I(f's_lshl_b32 s{S_T3}, s{S_WAVE}, 13'); e.I(f's_add_u32 s{S_T}, s{S_T}, s{S_T3}'); e.I(f's_add_u32 s{S_T}, s{S_T}, s{S_XB}')
        e.I(f'buffer_load_dword v{TT+4}, v{TT+1}, s[{SRD_X}:{SRD_X+3}], s{S_T} offen')
        e.I(f's_and_b32 s{S_T3}, s{S_MT}, 7'); e.I(f's_lshl_b32 s{S_T3}, s{S_T3}, 6')
        e.I(f'v_add_u32 v{TT+2}, s{S_T3}, v{TT}')
        for u in range(1, 5):
            k_ = kinds[u]
            L_ = f'{pfx}_tch{u}'
            e.I(f's_cmp_lg_u32 s{S_WAVE}, {u-1}'); e.I(f's_cbranch_scc1 {L_}')
            st = e.cond_begin()
            e.I(f's_mov_b32 s{S_T}, {ustride[k_]}'); e.I(f'v_mul_lo_u32 v{TT+3}, v{TT+2}, s{S_T}')
            e.I(f'buffer_load_dword v{TT+5}, v{TT+3}, s[{usrd[k_]}:{usrd[k_]+3}], s{S_UB+u} offen')
            e.pad8(); e.cond_end(st); e.label(L_)
    for i in range(8): e.I(f'v_mov_b32 v{V_ST+i}, 0')
    groups = []
    for s_ in range(8): groups.append((4 * s_, [('w', 0, s_), ('x', 0, s_), ('x', 1, s_)]))
    for u in (1, 2, 3, 4):
        for h in range(4): groups.append((32 * u + 8 * h, [('w', u, 2 * h), ('w', u, 2 * h + 1)]))
    LK = int(os.environ.get('LK', '5'))
    e.wait_vm_seq(max(ring.seq[i] for i in groups[0][1]))
    e.barrier()
    e.stamp(1, SRD_WS, 94, (58, 59), vz=57)

    queues = []
    def addq(start, dl, ops):
        if 'noepi' in ABL: return
        queues.append(dict(start=start, dl=dl, ops=list(ops)))
    bar_at = {}
    pre_groups = [gi for gi in range(1, len(groups)) if groups[gi][0] - LK < 0]
    for gi in range(1, len(groups)):
        if groups[gi][0] - LK >= 0: bar_at[groups[gi][0] - LK] = gi
    bars = sorted(bar_at)
    glast = [groups[gi + 1][0] - 1 if gi + 1 < len(groups) else 159 for gi in range(len(groups))]
    released = set()
    def next_bar(tau): return next(b for b in bars if b >= tau)
    b0 = next_bar(33)
    addq(b0, b0 + 7, stats_fin() + aug(0, 0))
    b1 = next_bar(65)
    addq(b1, b1 + 3, aug(1, 1))
    addq(b1 + 4, 94, epi_gu(0, 1, O_GU0))
    b2 = next_bar(97)
    addq(b2, b2 + 3, aug(0, 2))
    if typ == 'B': addq(b2 + 4, 126, epi_v(2, O_V1))
    b3 = next_bar(129)
    addq(b3, b3 + 3, aug(1, 3))
    addq(b3 + 4, 158, epi_gu(2, 0, O_GU1) if typ == 'A' else epi_v(0, O_V2))
    addq(b0 + 9, b0 + 10, [w2prep_dma])
    addq(b2 - 2, b2 - 1, [w2prep_proc])

    pend_dma = list(init[NPRE:])
    def take(n):
        r = pend_dma[:n]; del pend_dma[:n]; return r
    for gi in pre_groups:
        while any(i not in ring.seq for i in groups[gi][1]):
            run(e, pend_dma.pop(0))
    if pre_groups:
        e.wait_vm_seq(max(ring.seq[i] for gi in pre_groups for i in groups[gi][1]))
        e.barrier()
    for tk in range(LK):
        for op in xread(tk) + wread(tk): run(e, op)
    for op in sread(0): run(e, op)
    for tau in range(160):
        u, t_ = tau >> 5, tau & 31
        TL0 = int(os.environ.get('TL0', '-1'))
        if TL0 >= 0 and TL0 <= tau < TL0 + 14:
            e.raw(f'  s_memtime s[{64 + 2*(tau - TL0)}:{65 + 2*(tau - TL0)}]', 8)
        pre = []
        if tau in (32, 64, 96, 128):
            pre += cs_write((u - 1) & 1)
            if tau == 32: pre += stats_write()
        for op in pre: run(e, op)
        if tau in bar_at:
            gi = bar_at[tau]
            while any(i not in ring.seq for i in groups[gi][1]):
                run(e, pend_dma.pop(0))
            rsync(groups[gi][1], drain=(tau in (b0, b1, b2, b3, next_bar(b0 + 8))))(e)
            for gj in range(len(groups)):
                if gj not in released and glast[gj] < tau:
                    released.add(gj); release(groups[gj][1])
            pend_dma += refill()
        fl = []
        if tau + LK < 160:
            if tau + LK < 32: fl += xread(tau + LK)
            if 'nowread' not in ABL: fl += wread(tau + LK)
        if (t_ & 3) == 0 and 'nocs' not in ABL: fl += csread(u, t_ >> 2)
        mf = mm(tau)
        post = []
        if (t_ & 3) in (2, 3) and 'nocs' not in ABL: post += csmm(t_ >> 2, (t_ & 3) - 2)
        if u == 0:
            if (t_ & 3) == 0 and t_ + 2 < 32: fl += sread(t_ + 2)
            if t_ % 2 == 1 and 'nostat' not in ABL: post += stat_ops(t_ - 1)
        for q in queues:
            if q['ops'] and tau >= q['start']:
                real = [o for o in q['ops'] if o != 'MARK']
                rem = max(1, q['dl'] - tau + 1)
                n = (len(real) + rem - 1) // rem
                while q['ops'] and n > 0:
                    o = q['ops'].pop(0)
                    if o == 'MARK': break
                    fl.append(o); n -= 1
        fl += take(1)
        interleave(e, mf, fl)
        for op in post: run(e, op)
        if u == 0 and (t_ & 3) == 2 and t_ + 2 < 32:
            for op in sread(t_ + 2): run(e, op)
        if tau == 31: e.stamp(2, SRD_WS, 94, (58, 59), vz=57)
        if tau == 95: e.stamp(3, SRD_WS, 94, (58, 59), vz=57)
    assert not any([o for o in q['ops'] if o != 'MARK'] for q in queues), [len(q['ops']) for q in queues]
    assert not pend_dma
    e.stamp(4, SRD_WS, 94, (58, 59), vz=57)
    for op in cs_write(0) + [BAR] + [o for o in aug(0, 4) + epi_qk(1, O_QK) if o != 'MARK']: run(e, op)
    e.stamp(5, SRD_WS, 94, (58, 59), vz=57)
    if int(os.environ.get('TL0', '-1')) >= 0:
        e.raw('  s_waitcnt lgkmcnt(0)')
        e.I('v_mov_b32 v57, 0')
        for i in range(14):
            e.I(f'v_mov_b32 v58, s{64+2*i}')
            e.I(f'buffer_store_dword v58, v57, s[{SRD_WS}:{SRD_WS+3}], s94 offen offset:{128 + i*4}')
    e.I('s_endpgm')

def gen_k1():
    e = Emit()
    e.prof = PROF
    k1_prologue(e)
    k1_body(e, 'A')
    e.pad8()
    e.label('K1_TYPEB')
    e.lgkm = e.lgkm_done = 0; e.vm = e.vm_done = 0; e.pend = {}; e.window = []; e.alt = []; e.alt_ages = []
    k1_body(e, 'B')
    e.label('K1_END')
    e.I('s_endpgm')
    return e

if __name__ == '__main__':
    e = gen_k1()
    print(e.off, e.stats, e.nnop)
```

```python
from common import *
K1_LDS = 163840
K1_THREADS = 256
KA = 64
SRD_WS = 8
S_WAVE, S_RH, S_C, S_MT, S_P, S_R = 12, 13, 14, 15, 16, 17
S_T, S_T2, S_T3 = 18, 19, 20
S_XS = 21
S_WA = 22
S_WB = 23
S_L4K = 26
S_OUT = 28
S_QSC = 36; S_NL2E = 37
V_L16 = 1; V_VST = 2
V_XR = 3
V_WR = 6
NWB = 12
V_WF = 16
V_T = 64
V_ACC = 128
def acc(slot, rbk): return V_ACC + (slot * 2 + rbk) * 16
def xa(rbk, t): return (rbk * 32 + t) * 4
WBUF = [V_WF + 4 * i for i in range(NWB)]
SLOT = 8192; NSLOT = 20

def prologue(e):
    V = e.I
    V('s_cmp_ge_u32 s2, 256'); V('s_cbranch_scc1 K1_END')
    V(f's_load_dwordx2 s[{KA}:{KA+1}], s[0:1], 72')
    V('s_and_b32 s3, s2, 7'); V('s_lshr_b32 s4, s2, 3')
    V('s_and_b32 s5, s3, 1'); V('s_lshl_b32 s5, s5, 3'); V('s_and_b32 s6, s4, 7')
    V(f's_add_u32 s{S_MT}, s5, s6'); V(f's_lshr_b32 s{S_P}, s3, 1'); V(f's_lshr_b32 s{S_R}, s4, 3')
    V('v_and_b32 v70, 63, v0'); V('v_lshrrev_b32 v71, 6, v0'); V('s_nop 0'); V(f'v_readfirstlane_b32 s{S_WAVE}, v71')
    V(f'v_lshlrev_b32 v{V_L16}, 4, v70')
    V(f's_lshr_b32 s{S_RH}, s{S_WAVE}, 1'); V(f's_and_b32 s{S_C}, s{S_WAVE}, 1'); V(f's_lshl_b32 s{S_L4K}, s{S_WAVE}, 12')
    V(f's_lshl_b32 s{S_T}, s{S_RH}, 13'); V(f'v_add_u32 v{V_XR}, s{S_T}, v{V_L16}')
    V(f'v_add_u32 v{V_XR+1}, 0x10000, v{V_XR}'); V(f'v_add_u32 v{V_XR+2}, 0x20000, v{V_XR}')
    V(f's_lshl_b32 s{S_T}, s{S_C}, 12'); V(f'v_add_u32 v{V_WR}, s{S_T}, v{V_L16}')
    V(f'v_add_u32 v{V_WR+1}, 0x10000, v{V_WR}'); V(f'v_add_u32 v{V_WR+2}, 0x20000, v{V_WR}')
    V(f's_lshl_b32 s{S_T}, s{S_C}, 13'); V(f'v_add_u32 v{V_WR+3}, s{S_T}, v{V_L16}')
    V(f'v_add_u32 v{V_WR+4}, 0x10000, v{V_WR+3}'); V(f'v_add_u32 v{V_WR+5}, 0x20000, v{V_WR+3}')
    V('v_and_b32 v71, 15, v70'); V('v_lshlrev_b32 v71, 4, v71'); V('v_lshrrev_b32 v72, 5, v70'); V('v_lshl_add_u32 v71, v72, 8, v71')
    V('v_bfe_u32 v72, v70, 4, 1'); V(f'v_lshl_add_u32 v{V_VST}, v72, 16, v71')
    V(f's_mov_b32 s{S_NL2E}, 0x{f2u(-LOG2E):08x}')
    e.smem_wait()
    srd(e, SRD_WS, KA, WS_BYTES)
    V(f's_lshl_b32 s{S_T}, s{S_MT}, 2'); V(f's_add_u32 s{S_T}, s{S_T}, s{S_WAVE}'); V(f's_lshl_b32 s{S_T}, s{S_T}, 15'); V(f's_add_u32 s{S_XS}, s{S_T}, {XF}')
    V(f's_lshl_b32 s{S_T2}, s{S_MT}, 2'); V(f's_lshl_b32 s{S_T}, s{S_RH}, 1'); V(f's_add_u32 s{S_T2}, s{S_T2}, s{S_T}')
    V('s_lshl_b32 s94, s2, 11'); V(f's_lshl_b32 s95, s{S_WAVE}, 8'); V('s_add_u32 s94, s94, s95'); V(f's_add_u32 s94, s94, {PROFB}')
    e.stamp(0, SRD_WS, 94, (14, 15), vz=13)
    V(f's_cmp_eq_u32 s{S_R}, 3'); V('s_cbranch_scc1 K1_TYPEB')

def out_gu(e, sdst, s_pu):
    e.I(f's_lshl_b32 s{S_T}, s{s_pu}, 1'); e.I(f's_add_u32 s{S_T}, s{S_T}, s{S_C}'); e.I(f's_lshl_b32 s{S_T}, s{S_T}, 1')
    e.I(f's_mul_i32 s{S_T3}, s{S_T2}, 144'); e.I(f's_add_u32 s{S_T}, s{S_T}, s{S_T3}')
    e.I(f's_lshl_b32 s{S_T}, s{S_T}, 10'); e.I(f's_add_u32 s{sdst}, s{S_T}, {AF}')
    e.I(f's_add_u32 s{sdst+1}, s{sdst}, {144*1024}')
def out_head(e, sdst, s_unit, n):
    e.I(f's_lshl_b32 s{S_T}, s{s_unit}, 1'); e.I(f's_add_u32 s{S_T}, s{S_T}, s{S_C}'); e.I(f's_lshl_b32 s{S_T}, s{S_T}, 17')
    e.I(f's_lshl_b32 s{S_T3}, s{S_T2}, 10'); e.I(f's_add_u32 s{sdst}, s{S_T}, s{S_T3}')
    if n > 1: e.I(f's_add_u32 s{sdst+1}, s{sdst}, 65536')

def body(e, typ):
    U = 40
    O_GU0, O_GU1, O_V1, O_V2, O_QK = S_OUT, S_OUT + 2, S_OUT + 2, S_OUT + 3, S_OUT + 4
    I = e.I
    if typ == 'A':
        I(f's_mul_i32 s50, s{S_P}, 3'); I(f's_add_u32 s50, s50, s{S_R}')
        I('s_lshl_b32 s51, s50, 1'); I('s_add_u32 s52, s51, 1')
        for j, (src, base) in enumerate(((51, 48), (51, 104), (52, 48), (52, 104), (50, 0))):
            I(f's_lshl_b32 s{U+j}, s{src}, 1')
            if base: I(f's_add_u32 s{U+j}, s{U+j}, {base}')
        out_gu(e, O_GU0, 51); out_gu(e, O_GU1, 52); out_head(e, O_QK, 50, 2)
        I('s_cmp_lt_u32 s50, 8'); I(f's_cselect_b32 s{S_QSC}, 0x{f2u(QSCALE):08x}, 1.0')
    else:
        I(f's_add_u32 s50, s{S_P}, 24'); I(f's_add_u32 s51, s{S_P}, 12')
        I(f's_lshl_b32 s52, s{S_P}, 1'); I('s_add_u32 s52, s52, 16'); I('s_add_u32 s53, s52, 1')
        for j, (src, base) in enumerate(((50, 48), (50, 104), (52, 0), (53, 0), (51, 0))):
            I(f's_lshl_b32 s{U+j}, s{src}, 1')
            if base: I(f's_add_u32 s{U+j}, s{U+j}, {base}')
        out_gu(e, O_GU0, 50); out_head(e, O_V1, 52, 1); out_head(e, O_V2, 53, 1); out_head(e, O_QK, 51, 2)
        I(f's_mov_b32 s{S_QSC}, 1.0')
    isV = [False, False, typ == 'B', typ == 'B', False]
    I(f's_cmp_eq_u32 s{S_RH}, 1'); I(f's_cselect_b32 s{S_T}, s{U+1}, s{U}')
    I(f's_add_u32 s{S_T}, s{S_T}, s{S_C}'); I(f's_lshl_b32 s{S_T}, s{S_T}, 15'); I(f's_add_u32 s{S_WA}, s{S_T}, {WF}')
    for j in range(3):
        I(f's_add_u32 s{S_T}, s{U+2+j}, s{S_C}'); I(f's_lshl_b32 s{S_T}, s{S_T}, 15'); I(f's_lshl_b32 s{S_T3}, s{S_RH}, 12')
        I(f's_add_u32 s{S_T}, s{S_T}, s{S_T3}'); I(f's_add_u32 s{S_WB+j}, s{S_T}, {WF}')
    I(f's_lshl_b32 s{S_T}, s{S_C}, 13'); I(f's_lshl_b32 s{S_T3}, s{S_RH}, 12'); I(f's_add_u32 s27, s{S_T}, s{S_T3}')

    NP = NSLOT // 2
    free = list(range(NP)); pair = {}; seq = {}
    items = []
    for s_ in range(8): items += [('w0', s_), ('x', s_)]
    for u in (2, 3, 4):
        for h in range(4): items.append(('w', u, h))
    nxt = [0]
    def dma(item):
        base = pair[item] * 16384
        if item[0] == 'x': so, sl = f's_add_u32 s{S_T}, s{S_XS}, {item[1]*4096}', S_L4K
        elif item[0] == 'w0': so, sl = f's_add_u32 s{S_T}, s{S_WA}, {item[1]*4096}', S_L4K
        else: so, sl = f's_add_u32 s{S_T}, s{S_WB + item[1] - 2}, {item[2]*8192}', 27
        ops = [so, f's_add_u32 m0, s{sl}, {base}']
        def mk(k):
            def f(e):
                if 'nodma' in ABL and started[0]:
                    if k == 3: seq[item] = 0
                    return
                sq = e.I(f'buffer_load_dwordx4 v{V_L16}, s[{SRD_WS}:{SRD_WS+3}], s{S_T} offen offset:{k*1024} lds')
                if k == 3: seq[item] = sq
            return f
        def first(e):
            if 'nodma' in ABL and started[0]: return
            e.I(ops[0]); e.I(ops[1])
        def f0(e):
            first(e); mk(0)(e)
        return [f0, mk(1), mk(2), mk(3)]
    started = [False]
    def refill():
        ops = []
        while nxt[0] < len(items) and free:
            it = items[nxt[0]]; nxt[0] += 1
            pair[it] = free.pop(0)
            ops += dma(it)
        return ops
    def rd(dst, ad, vbase, n=4, kind='v'):
        return f'ds_read_b128 {kind}[{dst}:{dst+3}], v{vbase + (ad >> 16)} offset:{ad & 0xffff}'
    def frag_info(fi):
        if fi < 64:
            t_, j = fi >> 1, fi & 1
            return ('w0', t_ >> 2), j, t_, pair[('w0', t_ >> 2)] * 16384 + j * 8192 + (t_ & 3) * 1024, V_WR
        u = 2 + (fi - 64) // 32; t_ = (fi - 64) % 32
        return ('w', u, t_ >> 3), u, t_, pair[('w', u, t_ >> 3)] * 16384 + (t_ & 7) * 1024, V_WR + 3
    def wread(fi):
        it, u, t_, ad, vb = frag_info(fi)
        return [rd(WBUF[fi % NWB], ad, vb)]
    def xread(t_):
        base = pair[('x', t_ >> 2)] * 16384 + (t_ & 3) * 1024
        return [rd(xa(rbk, t_), base + rbk * 4096, V_XR, kind='a') for rbk in range(2)]
    uslot = [0, 1, 2, 3, 0]
    def mm(fi):
        if fi < 64: u, t_ = fi & 1, fi >> 1
        else: u, t_ = 2 + (fi - 64) // 32, (fi - 64) % 32
        wf = WBUF[fi % NWB]; out = []
        for rbk in range(2):
            d = acc(uslot[u], rbk)
            c = '0' if t_ == 0 else f'v[{d}:{d+15}]'
            X = f'a[{xa(rbk,t_)}:{xa(rbk,t_)+3}]'; W = f'v[{wf}:{wf+3}]'
            A, B = (X, W) if isV[u] else (W, X)
            out.append(f'v_mfma_f32_32x32x16_bf16 v[{d}:{d+15}], {A}, {B}, {c}')
        return out
    def epi_gu(sg, su, sout):
        out = []
        for rbk in range(2):
            G = acc(sg, rbk); Ur = acc(su, rbk)
            for hh in range(2):
                ix = range(8 * hh, 8 * hh + 8)
                out += [f'v_mul_f32 v{G+i}, s{S_NL2E}, v{G+i}' for i in ix]
                out += [f'v_exp_f32 v{G+i}, v{G+i}' for i in ix]
                out += [f'v_add_f32 v{G+i}, 1.0, v{G+i}' for i in ix]
                out += [f'v_rcp_f32 v{G+i}, v{G+i}' for i in ix]
                out += [f'v_mul_f32 v{Ur+i}, v{Ur+i}, v{G+i}' for i in ix]
                b = 8 * hh
                out += [f'v_cvt_pk_bf16_f32 v{G+b+j}, v{Ur+b+2*j}, v{Ur+b+2*j+1}' for j in range(4)]
                out.append(f'buffer_store_dwordx4 v[{G+b}:{G+b+3}], v{V_L16}, s[{SRD_WS}:{SRD_WS+3}], s{sout+rbk} offen offset:{hh*1024} sc1')
        return out
    def epi_qk(sl, sout):
        out = []
        for rbk in range(2):
            D = acc(sl, rbk)
            out += [f'v_mul_f32 v{D+i}, s{S_QSC}, v{D+i}' for i in range(16)]
            for hd in range(2):
                b = D + 8 * hd
                out += [f'v_cvt_pk_bf16_f32 v{b+j}, v{b+2*j}, v{b+2*j+1}' for j in range(4)]
                out.append(f'buffer_store_dwordx4 v[{b}:{b+3}], v{V_L16}, s[{SRD_WS}:{SRD_WS+3}], s{sout+hd} offen offset:{rbk*1024} sc1')
        return out
    def epi_v(sl, sout):
        out = []
        for rbk in range(2):
            D = acc(sl, rbk)
            for t2 in range(2):
                b = D + 8 * t2
                out += [f'v_cvt_pk_bf16_f32 v{b+j}, v{b+2*j}, v{b+2*j+1}' for j in range(4)]
                out.append(f'buffer_store_dwordx4 v[{b}:{b+3}], v{V_VST}, s[{SRD_WS}:{SRD_WS+3}], s{sout} offen offset:{rbk*1024 + t2*512} sc1')
        return out

    NF = 160
    LK = int(os.environ.get('LK', '8'))
    groups = [(8 * s_, [('w0', s_), ('x', s_)]) for s_ in range(8)]
    for u in (2, 3, 4):
        for h in range(4): groups.append((64 + 32 * (u - 2) + 8 * h, [('w', u, h)]))
    glast = [groups[i + 1][0] - 1 if i + 1 < len(groups) else NF - 1 for i in range(len(groups))]
    init = refill()
    pend = list(init)
    def take(n):
        r = pend[:n]; del pend[:n]; return r
    def need_issued(its):
        while any(i not in seq for i in its): run(e, pend.pop(0))
    for gi in range(int(os.environ.get('NPRE', '3'))): need_issued(groups[gi][1])
    started[0] = True
    e.wait_vm_seq(max(seq[i] for i in groups[0][1])); e.barrier()
    e.stamp(1, SRD_WS, 94, (14, 15), vz=13)
    bar_at = {}
    for gi in range(1, len(groups)):
        bar_at[max(0, groups[gi][0] - LK)] = gi
    released = set()
    queues = []
    def addq(start, dl, ops):
        if 'noepi' in ABL: return
        queues.append(dict(start=start, dl=dl, ops=list(ops)))
    addq(64 + 2, 64 + 62, epi_gu(0, 1, O_GU0))
    if typ == 'A':
        addq(128 + 2, 128 + 30, epi_gu(2, 3, O_GU1))
    else:
        addq(96 + 2, 96 + 20, epi_v(2, O_V1)); addq(128 + 2, 128 + 20, epi_v(3, O_V2))
    for fk in range(LK):
        if fk < 64 and fk % 2 == 0:
            for op in xread(fk >> 1): run(e, op)
        for op in wread(fk): run(e, op)
    for fi in range(NF):
        if fi in bar_at:
            gi = bar_at[fi]
            need_issued(groups[gi][1])
            if 'nosync' not in ABL:
                e.wait_vm_seq(max(seq[i] for i in groups[gi][1])); e.barrier()
            for gj in range(len(groups)):
                if gj not in released and glast[gj] < fi:
                    released.add(gj)
                    for it in groups[gj][1]: free.append(pair[it])
            pend += refill()
        fl = []
        fn = fi + LK
        if fn < NF:
            if fn < 64 and fn % 2 == 0: fl += xread(fn >> 1)
            fl += wread(fn)
        for q in queues:
            if q['ops'] and fi >= q['start']:
                rem = max(1, q['dl'] - fi + 1)
                n = (len(q['ops']) + rem - 1) // rem
                fl += q['ops'][:n]; del q['ops'][:n]
        mf = mm(fi)
        d_ = take(2 if len(pend) > 4 else 1)
        run(e, mf[0])
        for op in d_: run(e, op)
        h = (len(fl) + 1) // 2
        for op in fl[:h]: run(e, op)
        run(e, mf[1])
        for op in fl[h:]: run(e, op)
        if fi == 63: e.stamp(2, SRD_WS, 94, (14, 15), vz=13)
        if fi == 127: e.stamp(3, SRD_WS, 94, (14, 15), vz=13)
    assert not any(q['ops'] for q in queues) and not pend
    e.stamp(4, SRD_WS, 94, (14, 15), vz=13)
    for op in epi_qk(0, O_QK): run(e, op)
    e.stamp(5, SRD_WS, 94, (14, 15), vz=13)
    e.I('s_endpgm')

def gen_k1():
    e = Emit(); e.prof = PROF
    prologue(e)
    body(e, 'A')
    e.pad8(); e.label('K1_TYPEB')
    e.lgkm = e.lgkm_done = 0; e.vm = e.vm_done = 0; e.pend = {}; e.window = []; e.alt = []; e.alt_ages = []
    body(e, 'B')
    e.label('K1_END'); e.I('s_endpgm')
    return e
if __name__ == '__main__':
    e = gen_k1(); print(e.off, e.stats, e.nnop)
```

```python
from emit import *
from common import QF, VF, AF, W2F, FLAGS, WS_BYTES, srd, run, interleave, f2u

KA = 64
A_SRD = 8
A_MASK = 36
def lane_mask(i):
    m = 0
    for l in range(64):
        hf = l >> 5; a_ = l & 31
        b = 8 * (i >> 2) + 4 * hf + (i & 3)
        if b <= a_: m |= 1 << l
    return m

VK = 8
VV = 48
VQ = 128
VS = 136
VP = 184
VO = 200
VC = 216
VPM = 232
VM = 240
V_L16 = 1; V_INV = 2; V_VLD = 3; V_KSEL = 4

def attn_setup(e, s_head, s_rt, S0, bar=False):
    sK, sV, sT, sOne, sKb = S0, S0 + 1, S0 + 2, S0 + 3, S0 + 4
    e.I('v_and_b32 v5, 63, v0')
    e.I(f'v_lshlrev_b32 v{V_L16}, 4, v5')
    e.I('v_lshrrev_b32 v6, 5, v5')
    e.I(f'v_lshlrev_b32 v{V_INV}, 9, v6')
    e.I('v_and_b32 v7, 15, v5')
    e.I('v_lshlrev_b32 v7, 4, v7')
    e.I(f'v_lshl_add_u32 v{V_VLD}, v6, 8, v7')
    e.I(f's_lshl_b32 s{sT}, s{s_head}, 16')
    e.I(f's_lshl_b32 s{sKb}, s{s_rt}, 11')
    e.I(f's_add_u32 s{sQ(S0)}, s{sT}, s{sKb}')
    if QF: e.I(f's_add_u32 s{sQ(S0)}, s{sQ(S0)}, {QF}')
    e.I(f'buffer_load_dwordx4 v[{VQ}:{VQ+3}], v{V_L16}, s[{A_SRD}:{A_SRD+3}], s{sQ(S0)} offen')
    e.I(f'buffer_load_dwordx4 v[{VQ+4}:{VQ+7}], v{V_L16}, s[{A_SRD}:{A_SRD+3}], s{sQ(S0)} offen offset:1024')
    e.I(f's_add_u32 s{sK}, s{sT}, {QF + 32*65536}')
    e.I(f's_add_u32 s{sV}, s{sT}, {VF}')
    e.I(f's_sub_u32 s{sKb}, s{sKb}, 8192')
    for j in range(10):
        e.I(f's_cmp_ge_i32 s{sKb}, 0')
        e.I('s_cselect_b64 vcc, -1, 0')
        e.I(f's_cselect_b32 s{sT}, s{sKb}, 0')
        e.I(f's_add_u32 s{sT}, s{sT}, s{sK}')
        e.I(f'v_cndmask_b32 v{V_KSEL}, v{V_INV}, v{V_L16}, vcc')
        e.I(f'buffer_load_dwordx4 v[{VK+4*j}:{VK+4*j+3}], v{V_KSEL}, s[{A_SRD}:{A_SRD+3}], s{sT} offen')
        e.I(f's_add_u32 s{sKb}, s{sKb}, 1024')
    e.I(f's_sub_u32 s{sKb}, s{sKb}, 10240')
    for j in range(10):
        e.I(f's_cmp_ge_i32 s{sKb}, 0')
        e.I(f's_cselect_b32 s{sOne}, 0x3f803f80, 0')
        e.I(f's_add_u32 s{sT}, s{sKb}, s{sV}')
        e.I(f's_cmp_ge_i32 s{sKb}, 0')
        e.I(f's_cselect_b32 s{sT}, s{sT}, 0x7ff00000')
        for r in range(8): e.I(f'v_mov_b32 v{VV+8*j+r}, s{sOne}')
        e.I('s_mov_b32 exec_lo, 0xffff')
        e.I('s_mov_b32 exec_hi, 0xffff')
        for t in range(2):
            e.I(f'buffer_load_dwordx4 v[{VV+8*j+4*t}:{VV+8*j+4*t+3}], v{V_VLD}, s[{A_SRD}:{A_SRD+3}], s{sT} offen offset:{t*512}')
        e.I('s_mov_b64 exec, -1')
        e.I(f's_add_u32 s{sKb}, s{sKb}, 1024')
    if bar: e.barrier()
    for i in range(16):
        m = lane_mask(i)
        e.I(f's_mov_b32 s{A_MASK+2*i}, 0x{m & 0xffffffff:08x}')
        e.I(f's_mov_b32 s{A_MASK+2*i+1}, 0x{m >> 32:08x}')
    e.I(f'v_mov_b32 v{VM}, 0xffff')
    e.I(f'v_mov_b32 v{VM+1}, 0xffff0000')
    for jj in range(8):
        e.I(f'v_cndmask_b32 v{VPM+jj}, 0, v{VM}, s[{A_MASK+4*jj}:{A_MASK+4*jj+1}]')
        e.I(f'v_cndmask_b32 v{VM+2}, 0, v{VM+1}, s[{A_MASK+4*jj+2}:{A_MASK+4*jj+3}]')
        e.I(f'v_or_b32 v{VPM+jj}, v{VPM+jj}, v{VM+2}')

def sQ(S0): return S0 + 5

def attn_task(e, j0, q, s_out, stmod=''):
    K = lambda j: f'v[{VK+4*(j0+j)}:{VK+4*(j0+j)+3}]'
    Vf = lambda j, t: f'v[{VV+8*(j0+j)+4*t}:{VV+8*(j0+j)+4*t+3}]'
    Q = f'v[{VQ+4*q}:{VQ+4*q+3}]'
    S = lambda b: VS + 16 * b
    Sr = lambda b: f'v[{S(b)}:{S(b)+15}]'
    m0, m1 = VM, VM + 1
    def smm(j, b, c): return f'v_mfma_f32_32x32x16_bf16 {Sr(b)}, {K(j)}, {Q}, {c}'
    def merge(ba, bb):
        return [f'v_cndmask_b32 v{S(bb)+i}, v{S(ba)+i}, v{S(bb)+i}, s[{A_MASK+2*i}:{A_MASK+2*i+1}]' for i in range(16)]
    def maxes(b, first=False):
        out = []
        for i in range(8):
            m = m0 if i % 2 == 0 else m1
            if first and i < 2: out.append(f'v_max_f32 v{m}, v{S(b)+2*i}, v{S(b)+2*i+1}')
            else: out.append(f'v_max3_f32 v{m}, v{S(b)+2*i}, v{S(b)+2*i+1}, v{m}')
        return out
    e.I(smm(0, 0, '0')); e.I(smm(8, 1, '0')); e.I(smm(1, 2, '0'))
    for op in merge(0, 1): e.I(op)
    e.I(smm(2, 0, '0'))
    for op in maxes(1, True): e.I(op)
    cur = 2
    bufs = {1: 2, 2: 0}
    for j in range(1, 8):
        if j + 2 <= 7:
            nb = [b for b in range(3) if b not in (bufs[j], bufs[j + 1])][0]
            bufs[j + 2] = nb
            e.I(smm(j + 2, nb, '0'))
        for op in maxes(bufs[j]): e.I(op)
    e.I(f'v_max_f32 v{m0}, v{m0}, v{m1}')
    e.I(f'v_mov_b32 v{m1}, v{m0}')
    e.I(f'v_permlane32_swap_b32 v{m0}, v{m1}')
    e.I(f'v_max_f32 v{m0}, v{m0}, v{m1}')
    for i in range(16): e.I(f'v_sub_f32 v{VC+i}, 0, v{m0}')
    C = f'v[{VC}:{VC+15}]'
    O = f'v[{VO}:{VO+15}]'
    def expcvt(b, p):
        out = []
        for g in range(2):
            out += [f'v_exp_f32 v{S(b)+8*g+i}, v{S(b)+8*g+i}' for i in range(8)]
            out += [f'v_cvt_pk_bf16_f32 v{p+4*g+i}, v{S(b)+8*g+2*i}, v{S(b)+8*g+2*i+1}' for i in range(4)]
        return out
    first = [True]
    def pv(j, p):
        out = []
        for t in range(2):
            c = '0' if first[0] else O
            first[0] = False
            out.append(f'v_mfma_f32_32x32x16_bf16 {O}, {Vf(j,t)}, v[{p+4*t}:{p+4*t+3}], {c}')
        return out
    e.I(smm(0, 0, C)); e.I(smm(8, 1, C)); e.I(smm(1, 2, C))
    for op in merge(0, 1): e.I(op)
    e.I(smm(2, 0, C))
    P0, P1 = VP, VP + 8
    for op in expcvt(1, P0): e.I(op)
    for i in range(8): e.I(f'v_bfi_b32 v{P1+i}, v{VPM+i}, 0, v{P0+i}')
    for i in range(8): e.I(f'v_and_b32 v{P0+i}, v{VPM+i}, v{P0+i}')
    for op in pv(0, P1) + pv(8, P0): e.I(op)
    bufs = {1: 2, 2: 0}
    for j in range(1, 8):
        if j + 2 <= 7:
            nb = [b for b in range(3) if b not in (bufs[j], bufs[j + 1])][0]
            bufs[j + 2] = nb
            e.I(smm(j + 2, nb, C))
        p = P0 if j % 2 else P1
        for op in expcvt(bufs[j], p): e.I(op)
        for op in pv(j, p): e.I(op)
    e.I(f'v_rcp_f32 v{m0}, v{VO+8}')
    for i in range(8): e.I(f'v_mul_f32 v{VO+i}, v{VO+i}, v{m0}')
    for i in range(4): e.I(f'v_cvt_pk_bf16_f32 v{VO+i}, v{VO+2*i}, v{VO+2*i+1}')
    e.I(f'buffer_store_dwordx4 v[{VO}:{VO+3}], v{V_L16}, s[{A_SRD}:{A_SRD+3}], s{s_out} offen{stmod}')

def gen_attn():
    e = Emit()
    e.I('s_cmp_ge_u32 s2, 256')
    e.I('s_cbranch_scc1 K2A_END')
    e.I(f's_load_dwordx2 s[{KA}:{KA+1}], s[0:1], 72')
    e.I('v_lshrrev_b32 v2, 6, v0')
    e.I('s_nop 0')
    e.I('v_readfirstlane_b32 s4, v2')
    e.I('s_and_b32 s5, s2, 7')
    e.I('s_lshl_b32 s5, s5, 2')
    e.I('s_lshr_b32 s6, s2, 3')
    e.I('s_and_b32 s7, s6, 3')
    e.I('s_add_u32 s5, s5, s7')
    e.I('s_lshr_b32 s6, s6, 2')
    e.I('s_lshl_b32 s6, s6, 2')
    e.I('s_add_u32 s6, s6, s4')
    e.smem_wait()
    srd(e, A_SRD, KA, WS_BYTES)
    attn_setup(e, 6, 5, 70)
    e.I('s_mul_i32 s80, s5, 288')
    e.I('s_add_u32 s80, s80, s6')
    e.I('s_add_u32 s80, s80, 112')
    e.I('s_lshl_b32 s80, s80, 10')
    e.I(f's_add_u32 s80, s80, {AF}')
    e.I(f's_add_u32 s81, s80, {144*1024}')
    attn_task(e, 0, 0, 80)
    attn_task(e, 1, 1, 81)
    e.label('K2A_END')
    e.I('s_endpgm')
    return e

G_SRD = 8; G_OUT = 12; G_X = 16
K2B_LDS = 4 * 64 * 272
def gen_gemm3():
    e = Emit()
    e.I('s_cmp_ge_u32 s2, 256')
    e.I('s_cbranch_scc1 K2B_END')
    e.I(f's_load_dwordx2 s[{KA}:{KA+1}], s[0:1], 72')
    e.I(f's_load_dwordx2 s[{KA+2}:{KA+3}], s[0:1], 56')
    e.I(f's_load_dwordx2 s[{KA+4}:{KA+5}], s[0:1], 0')
    e.I('v_lshrrev_b32 v2, 6, v0')
    e.I('v_and_b32 v5, 63, v0')
    e.I('v_readfirstlane_b32 s4, v2')
    e.I('s_and_b32 s5, s2, 7')
    e.I('s_lshl_b32 s5, s5, 2')
    e.I('s_lshr_b32 s6, s2, 3')
    e.I('s_and_b32 s7, s6, 3')
    e.I('s_add_u32 s5, s5, s7')
    e.I('s_lshr_b32 s6, s6, 2')
    e.I('v_lshlrev_b32 v1, 4, v5')
    e.I(f'v_add_u32 v2, {144*1024}, v1')
    e.smem_wait()
    srd(e, G_SRD, KA, WS_BYTES)
    srd(e, G_OUT, KA + 2, 2048 * 1024)
    srd(e, G_X, KA + 4, 2048 * 1024)
    e.I('s_mul_i32 s20, s5, 288'); e.I('s_lshl_b32 s20, s20, 10'); e.I(f's_add_u32 s20, s20, {AF}')
    e.I('s_mul_i32 s21, s6, 288'); e.I('s_lshl_b32 s21, s21, 10'); e.I(f's_add_u32 s21, s21, {W2F}')
    e.I('s_mul_i32 s22, s4, 28'); e.I('s_lshl_b32 s22, s22, 10')
    e.I('s_lshl_b32 s23, s4, 3'); e.I('s_add_u32 s23, s23, 112'); e.I('s_lshl_b32 s23, s23, 10')
    e.I('s_add_u32 s24, s20, s22'); e.I('s_add_u32 s25, s21, s22')
    e.I('s_add_u32 s26, s20, s23'); e.I('s_add_u32 s27, s21, s23')
    NB = 8
    VB = 64
    ACC = 0 + 192
    def loads(i):
        b = VB + 16 * (i % NB)
        if i < 28: sa, sw, k = 24, 25, i
        else: sa, sw, k = 26, 27, i - 28
        out = []
        if k % 4 == 0 and k > 0:
            out += [f's_add_u32 s{sa}, s{sa}, 4096', f's_add_u32 s{sw}, s{sw}, 4096']
        im = (k % 4) * 1024
        out += [f'buffer_load_dwordx4 v[{b}:{b+3}], v1, s[{G_SRD}:{G_SRD+3}], s{sw} offen offset:{im}',
                f'buffer_load_dwordx4 v[{b+8}:{b+11}], v1, s[{G_SRD}:{G_SRD+3}], s{sa} offen offset:{im}',
                f'buffer_load_dwordx4 v[{b+4}:{b+7}], v2, s[{G_SRD}:{G_SRD+3}], s{sw} offen offset:{im}',
                f'buffer_load_dwordx4 v[{b+12}:{b+15}], v2, s[{G_SRD}:{G_SRD+3}], s{sa} offen offset:{im}']
        return out
    for i in range(NB):
        for op in loads(i): e.I(op)
    for i in range(36):
        b = VB + 16 * (i % NB)
        for cbk in range(2):
            for rbk in range(2):
                d = ACC + 16 * (cbk * 2 + rbk)
                c = '0' if i == 0 else f'v[{d}:{d+15}]'
                e.I(f'v_mfma_f32_32x32x16_bf16 v[{d}:{d+15}], v[{b+4*cbk}:{b+4*cbk+3}], v[{b+8+4*rbk}:{b+8+4*rbk+3}], {c}')
        if i + NB < 36:
            for op in loads(i + NB): e.I(op)
    e.I('v_and_b32 v3, 31, v5')
    e.I('v_lshrrev_b32 v4, 5, v5')
    e.I('s_mov_b32 s30, 272')
    e.I('v_mul_lo_u32 v3, v3, s30')
    e.I('v_lshl_add_u32 v3, v4, 4, v3')
    e.I('s_mul_i32 s31, s4, 17408')
    e.I('v_add_u32 v3, s31, v3')
    e.I('v_lshrrev_b32 v6, 2, v0')
    e.I('v_and_b32 v7, 3, v0')
    e.I('s_lshl_b32 s32, s5, 16')
    e.I('s_lshl_b32 s33, s6, 7')
    e.I('s_add_u32 s32, s32, s33')
    e.I('v_lshlrev_b32 v8, 10, v6')
    e.I('v_lshl_add_u32 v8, v7, 5, v8')
    e.I(f'buffer_load_dwordx4 v[16:19], v8, s[{G_X}:{G_X+3}], s32 offen')
    e.I(f'buffer_load_dwordx4 v[20:23], v8, s[{G_X}:{G_X+3}], s32 offen offset:16')
    for cbk in range(2):
        for rbk in range(2):
            d = ACC + 16 * (cbk * 2 + rbk)
            for j in range(4):
                e.I(f'ds_write_b128 v3, v[{d+4*j}:{d+4*j+3}] offset:{rbk*32*272 + cbk*128 + j*32}')
    e.wait(lgkm=0)
    e.barrier()
    e.I('v_mul_lo_u32 v9, v6, s30')
    e.I('v_lshl_add_u32 v9, v7, 6, v9')
    for w in range(4):
        for q in range(4):
            e.I(f'ds_read_b128 v[{64+16*w+4*q}:{64+16*w+4*q+3}], v9 offset:{w*17408 + q*16}')
    for i in range(16):
        e.I(f'v_add_f32 v{64+i}, v{64+i}, v{80+i}')
        e.I(f'v_add_f32 v{96+i}, v{96+i}, v{112+i}')
    for i in range(16):
        e.I(f'v_add_f32 v{64+i}, v{64+i}, v{96+i}')
    for d in range(8):
        e.I(f'v_lshlrev_b32 v{32+2*d}, 16, v{16+d}')
        e.I(f'v_and_b32 v{33+2*d}, 0xffff0000, v{16+d}')
    for i in range(16):
        e.I(f'v_add_f32 v{64+i}, v{64+i}, v{32+i}')
    for d in range(8):
        e.I(f'v_cvt_pk_bf16_f32 v{16+d}, v{64+2*d}, v{65+2*d}')
    e.I(f'buffer_store_dwordx4 v[16:19], v8, s[{G_OUT}:{G_OUT+3}], s32 offen')
    e.I(f'buffer_store_dwordx4 v[20:23], v8, s[{G_OUT}:{G_OUT+3}], s32 offen offset:16')
    e.label('K2B_END')
    e.I('s_endpgm')
    return e


import os
PROF = os.environ.get('PROF', '') != ''
def gen_k2():
    e = Emit()
    e.prof = PROF
    e.I('s_cmp_ge_u32 s2, 256')
    e.I('s_cbranch_scc1 K2_END')
    e.I(f's_load_dwordx2 s[{KA}:{KA+1}], s[0:1], 72')
    e.I(f's_load_dwordx2 s[{KA+2}:{KA+3}], s[0:1], 56')
    e.I(f's_load_dwordx2 s[{KA+4}:{KA+5}], s[0:1], 0')
    e.I('v_lshrrev_b32 v2, 6, v0')
    e.I('v_and_b32 v5, 63, v0')
    e.I('v_readfirstlane_b32 s4, v2')
    e.I('s_and_b32 s5, s2, 7'); e.I('s_lshl_b32 s5, s5, 2'); e.I('s_lshr_b32 s6, s2, 3'); e.I('s_and_b32 s7, s6, 3')
    e.I('s_add_u32 s5, s5, s7')
    e.I('s_lshr_b32 s6, s6, 2')
    e.smem_wait()
    srd(e, 8, KA, WS_BYTES)
    e.I('s_lshl_b32 s90, s5, 7'); e.I(f's_add_u32 s90, s90, {FLAGS}')
    e.I(f's_add_u32 s88, s{KA}, s90'); e.I(f's_addc_u32 s89, s{KA+1}, 0')
    e.I('s_lshl_b32 s94, s2, 11'); e.I('s_lshl_b32 s95, s4, 8'); e.I('s_add_u32 s94, s94, s95'); e.I(f's_add_u32 s94, s94, {(19 << 20) + (1 << 19)}')
    e.I('s_cmp_lt_u32 s4, 4')
    e.I('s_cbranch_scc1 K2_ATTN')
    e.I('s_sub_u32 s4, s4, 4')
    e.I('v_and_b32 v0, 255, v0')
    if os.environ.get('GPRIO', '0') != '0': e.I(f"s_setprio {os.environ.get('GPRIO')}")
    e.stamp(0, 8, 94, (14, 15), vz=13, stmp=96)
    srd(e, G_OUT, KA + 2, 2048 * 1024)
    srd(e, G_X, KA + 4, 2048 * 1024)
    e.I('v_lshlrev_b32 v1, 4, v5')
    e.I(f'v_add_u32 v2, {144*1024}, v1')
    e.I('s_mul_i32 s20, s5, 288'); e.I('s_lshl_b32 s20, s20, 10'); e.I(f's_add_u32 s20, s20, {AF}')
    e.I('s_mul_i32 s21, s6, 288'); e.I('s_lshl_b32 s21, s21, 10'); e.I(f's_add_u32 s21, s21, {W2F}')
    e.I('s_mul_i32 s22, s4, 28'); e.I('s_lshl_b32 s22, s22, 10')
    e.I('s_lshl_b32 s23, s4, 3'); e.I('s_add_u32 s23, s23, 112'); e.I('s_lshl_b32 s23, s23, 10')
    e.I('s_add_u32 s24, s20, s22'); e.I('s_add_u32 s25, s21, s22')
    e.I('s_add_u32 s26, s20, s23'); e.I('s_add_u32 s27, s21, s23'); e.I('s_mov_b32 s28, s27')
    NB = int(os.environ.get('NB', '8'))
    VB = 192 - 16 * NB
    ACC = 192
    def wloads(i):
        b = VB + 16 * (i % NB)
        if i < 28: sw, k = 25, i
        else: sw, k = 27, i - 28
        out = []
        if k % 4 == 0 and k > 0: out += [f's_add_u32 s{sw}, s{sw}, 4096']
        im = (k % 4) * 1024
        out += [f'buffer_load_dwordx4 v[{b}:{b+3}], v1, s[8:11], s{sw} offen offset:{im}',
                f'buffer_load_dwordx4 v[{b+4}:{b+7}], v2, s[8:11], s{sw} offen offset:{im}']
        return out
    def aloads(i):
        b = VB + 16 * (i % NB)
        if i < 28: sa, k, md = 24, i, ''
        else: sa, k, md = 26, i - 28, ' sc1'
        out = []
        if k % 4 == 0 and k > 0: out += [f's_add_u32 s{sa}, s{sa}, 4096']
        im = (k % 4) * 1024
        out += [f'buffer_load_dwordx4 v[{b+8}:{b+11}], v1, s[8:11], s{sa} offen offset:{im}{md}',
                f'buffer_load_dwordx4 v[{b+12}:{b+15}], v2, s[8:11], s{sa} offen offset:{im}{md}']
        return out
    e.I('v_lshrrev_b32 v6, 2, v0'); e.I('v_and_b32 v7, 3, v0')
    e.I('s_lshl_b32 s32, s5, 16'); e.I('s_lshl_b32 s33, s6, 7'); e.I('s_add_u32 s32, s32, s33')
    e.I('v_lshlrev_b32 v8, 10, v6'); e.I('v_lshl_add_u32 v8, v7, 5, v8')
    XR_LATE = NB > 10
    if not XR_LATE:
        e.I(f'buffer_load_dwordx4 v[16:19], v8, s[{G_X}:{G_X+3}], s32 offen')
        e.I(f'buffer_load_dwordx4 v[20:23], v8, s[{G_X}:{G_X+3}], s32 offen offset:16')
    if os.environ.get('SBAR', '1') == '1': e.barrier()
    for i in range(NB):
        w_, a_ = wloads(i), aloads(i)
        for op in w_ + a_: e.I(op)
    pend_a = []
    for i in range(36):
        if i == 28 - 0:
            pass
        b = VB + 16 * (i % NB)
        if i == 28:
            e.stamp(1, 8, 94, (14, 15), vz=13, stmp=96)
            e.I('v_mov_b32 v9, 0')
            e.I('s_mov_b32 s34, 0')
            e.pad8()
            e.label('K2_POLL')
            e.raw('  global_load_dword v10, v9, s[88:89] sc1', 8)
            e.raw('  s_waitcnt vmcnt(0)')
            e.raw('  v_readfirstlane_b32 s35, v10')
            e.raw('  s_add_u32 s34, s34, 1')
            e.raw('  s_cmp_ge_u32 s35, 32')
            e.raw('  s_cbranch_scc1 K2_GO')
            e.raw('  s_sleep 2')
            e.raw('  s_cmp_lt_u32 s34, 0x400000', 8)
            e.raw('  s_cbranch_scc1 K2_POLL')
            e.pad8()
            e.label('K2_GO')
            e.vm_done = e.vm; e.pend = {r: p for r, p in e.pend.items() if p[0] != 'v'}
            e.stamp(2, 8, 94, (14, 15), vz=13, stmp=96)
            for j in pend_a:
                for op in aloads(j): e.I(op)
        for cbk in range(2):
            for rbk in range(2):
                d = ACC + 16 * (cbk * 2 + rbk)
                c = '0' if i == 0 else f'v[{d}:{d+15}]'
                e.I(f'v_mfma_f32_32x32x16_bf16 v[{d}:{d+15}], v[{b+4*cbk}:{b+4*cbk+3}], v[{b+8+4*rbk}:{b+8+4*rbk+3}], {c}')
        if i + NB < 36:
            j = i + NB
            for op in wloads(j): e.I(op)
            if j < 28:
                for op in aloads(j): e.I(op)
            else:
                pend_a.append(j)
    e.stamp(3, 8, 94, (14, 15), vz=13, stmp=96)
    if XR_LATE:
        e.I(f'buffer_load_dwordx4 v[16:19], v8, s[{G_X}:{G_X+3}], s32 offen')
        e.I(f'buffer_load_dwordx4 v[20:23], v8, s[{G_X}:{G_X+3}], s32 offen offset:16')
    e.I('v_and_b32 v3, 31, v5'); e.I('v_lshrrev_b32 v4, 5, v5'); e.I('s_mov_b32 s30, 272')
    e.I('v_mul_lo_u32 v3, v3, s30'); e.I('v_lshl_add_u32 v3, v4, 4, v3'); e.I('s_mul_i32 s31, s4, 17408'); e.I('v_add_u32 v3, s31, v3')
    for cbk in range(2):
        for rbk in range(2):
            d = ACC + 16 * (cbk * 2 + rbk)
            for j in range(4):
                e.I(f'ds_write_b128 v3, v[{d+4*j}:{d+4*j+3}] offset:{rbk*32*272 + cbk*128 + j*32}')
    e.I('v_mul_lo_u32 v9, v6, s30'); e.I('v_lshl_add_u32 v9, v7, 6, v9')
    for d in range(8):
        e.I(f'v_lshlrev_b32 v{32+2*d}, 16, v{16+d}')
        e.I(f'v_and_b32 v{33+2*d}, 0xffff0000, v{16+d}')
    e.wait(lgkm=0)
    e.barrier()
    for w in range(4):
        for q in range(4):
            e.I(f'ds_read_b128 v[{64+16*w+4*q}:{64+16*w+4*q+3}], v9 offset:{w*17408 + q*16}')
    for i in range(16):
        e.I(f'v_add_f32 v{64+i}, v{64+i}, v{80+i}')
        e.I(f'v_add_f32 v{96+i}, v{96+i}, v{112+i}')
    for i in range(16):
        e.I(f'v_add_f32 v{64+i}, v{64+i}, v{32+i}')
    for i in range(16):
        e.I(f'v_add_f32 v{64+i}, v{64+i}, v{96+i}')
    for d in range(8):
        e.I(f'v_cvt_pk_bf16_f32 v{16+d}, v{64+2*d}, v{65+2*d}')
    e.I(f'buffer_store_dwordx4 v[16:19], v8, s[{G_OUT}:{G_OUT+3}], s32 offen')
    e.I(f'buffer_store_dwordx4 v[20:23], v8, s[{G_OUT}:{G_OUT+3}], s32 offen offset:16')
    e.stamp(4, 8, 94, (14, 15), vz=13, stmp=96)
    e.I('s_endpgm')
    e.pad8()
    e.label('K2_ATTN')
    e.lgkm = e.lgkm_done = 0; e.vm = e.vm_done = 0; e.pend = {}; e.window = []; e.alt = []; e.alt_ages = []
    e.stamp(0, 8, 94, (14, 15), vz=13, stmp=96)
    if os.environ.get('APRIO', '1') != '0': e.I(f"s_setprio {os.environ.get('APRIO', '1')}")
    e.I('s_lshl_b32 s6, s6, 2'); e.I('s_add_u32 s6, s6, s4')
    if os.environ.get('NOATTN'): e.I('s_branch K2_SIG')
    attn_setup(e, 6, 5, 70, bar=os.environ.get('SBAR', '1') == '1')
    e.I('s_mul_i32 s80, s5, 288'); e.I('s_add_u32 s80, s80, s6'); e.I('s_add_u32 s80, s80, 112')
    e.I('s_lshl_b32 s80, s80, 10'); e.I(f's_add_u32 s80, s80, {AF}'); e.I(f's_add_u32 s81, s80, {144*1024}')
    attn_task(e, 0, 0, 80, ' sc1')
    e.stamp(1, 8, 94, (14, 15), vz=13, stmp=96)
    attn_task(e, 1, 1, 81, ' sc1')
    e.wait(vm=0)
    e.pad8(); e.label('K2_SIG')
    e.I('v_mov_b32 v9, 0'); e.I('v_mov_b32 v10, 1')
    e.I('s_mov_b32 exec_lo, 1'); e.I('s_mov_b32 exec_hi, 0')
    e.I('global_atomic_add v9, v10, s[88:89]')
    e.I('s_mov_b64 exec, -1')
    e.stamp(2, 8, 94, (14, 15), vz=13, stmp=96)
    e.label('K2_END')
    e.I('s_endpgm')
    return e

if __name__ == '__main__':
    for g in (gen_attn, gen_gemm3):
        e = g(); print(e.off, e.stats, e.nnop)
```

```python
import sys, os
sys.path.insert(0, 'gen')
NAME = 'parallel_sum__sliding_block__glu_gated_glu__prompt'
HDR = open(f'cdna_kernels/{NAME}.s.ref').read().split('; Override launch geometry')[0]
def kd(name, vgpr, accum, sgpr=102):
    return f""".amdhsa_kernel {name}
  .amdhsa_next_free_vgpr {vgpr}
  .amdhsa_next_free_sgpr {sgpr}
  .amdhsa_accum_offset {accum}
  .amdhsa_group_segment_fixed_size 0
  .amdhsa_kernarg_size 80
  .amdhsa_user_sgpr_count 2
  .amdhsa_user_sgpr_kernarg_segment_ptr 1
  .amdhsa_system_sgpr_workgroup_id_x 1
.end_amdhsa_kernel
"""
def build(path=None):
    from k2 import gen_k2, K2B_LDS
    if os.environ.get('VARIANT', 'A') == 'B':
        from k1p import gen_k1, K1_LDS
        from k0 import gen_k0, K0_LDS
        ks = [('k0_kernel', gen_k0(), 256, K0_LDS, 96, 96), ('k1_kernel', gen_k1(), 256, K1_LDS, 512, 256)]
    else:
        from k1 import gen_k1, K1_LDS
        ks = [('k1_kernel', gen_k1(), 256, K1_LDS, 512, 256)]
    ks.append(('k2_kernel', gen_k2(), 512, K2B_LDS, 256, 256))
    out = HDR
    for n, e, blk, lds, vg, ac in ks:
        out += f'; @launch kernel={n} grid=(256,1,1) block=({blk},1,1) lds={lds}\n'
    out += '.amdgcn_target "amdgcn-amd-amdhsa--gfx950"\n.text\n'
    for n, e, blk, lds, vg, ac in ks:
        txt = e.text()
        if n == 'k1_kernel':
            sm = os.environ.get('STMOD', 'sc1')
            if sm != 'none':
                txt = '\n'.join((l + ' ' + sm) if ('buffer_store_dwordx4' in l and 'sc1' not in l) else l for l in txt.split('\n'))
        out += f'.globl {n}\n.p2align 8\n.type {n},@function\n{n}:\n' + txt
    out += 'CODE_END:\n  s_endpgm\n'
    out += '.section .rodata,"a"\n'
    for n, e, blk, lds, vg, ac in ks:
        out += '.p2align 6\n' + kd(n, vg, ac)
    path = path or f'cdna_kernels/{NAME}.s'
    open(path, 'w').write(out)
    print('wrote', path, len(out), 'bytes;', {n: e.off for n, e, *_ in ks})
if __name__ == '__main__':
    build(sys.argv[1] if len(sys.argv) > 1 else None)
```
